```python
import torch

def _softmax(x, axis=-1):
    return torch.softmax(x, dim=axis)
def _gelu(x):
    return torch.nn.functional.gelu(x, approximate="tanh")
def _silu(x):
    return torch.nn.functional.silu(x)
def _sigmoid(x):
    return torch.sigmoid(x)
def _layernorm(x, axis=-1, eps=1e-5):
    m = x.mean(dim=axis, keepdim=True)
    v = x.var(dim=axis, keepdim=True, unbiased=False)
    return (x - m) / torch.sqrt(v + eps)
def _scatter_add(tgt, idx, src, axis=0):
    return tgt.clone().index_add_(axis, idx, src)
def _segment_sum(src, seg, n):
    out = torch.zeros((n,) + src.shape[1:], dtype=src.dtype)
    return out.index_add_(0, seg, src)
def _pad(x, pw):
    flat = tuple(v for pair in reversed(pw) for v in pair)
    return torch.nn.functional.pad(x, flat)

kernel_name = 'gated_mix__ssm_conv_s5__linear_kernel_hedgehog__prompt'

def setup_inputs():

    _w = (lambda a: (lambda t: t.to(torch.bfloat16) if t.is_floating_point() else t)(torch.as_tensor(a)))
    def _A_setup():
        B, S, D = 1, 2048, 576
        P = D
        Lambda_re = -0.5 * (lambda _x: torch.exp(torch.as_tensor(_x)))((lambda *s: torch.randn(*s, dtype=torch.bfloat16) * 0.8)(P))
        Lambda_im = (lambda *s: torch.randn(*s, dtype=torch.bfloat16) * 0.8)(P) * 1.0
        B_re = (lambda *s: torch.randn(*s, dtype=torch.bfloat16) * 0.8)(P, D) * (D ** -0.5)
        B_im = (lambda *s: torch.randn(*s, dtype=torch.bfloat16) * 0.8)(P, D) * (D ** -0.5)
        C_re = (lambda *s: torch.randn(*s, dtype=torch.bfloat16) * 0.8)(D, P) * (P ** -0.5)
        C_im = (lambda *s: torch.randn(*s, dtype=torch.bfloat16) * 0.8)(D, P) * (P ** -0.5)
        log_dt = (lambda *s: torch.randn(*s, dtype=torch.bfloat16) * 0.8)(P) * 0.3 - 2.0
        Dskip = (lambda *s: torch.randn(*s, dtype=torch.bfloat16) * 0.8)(D)
        return {
            "x": _w((lambda *s: torch.randn(*s, dtype=torch.bfloat16) * 0.05)(B, S, D)),
            "Lambda_re": _w(Lambda_re),
            "Lambda_im": _w(Lambda_im),
            "B_re": _w(B_re),
            "B_im": _w(B_im),
            "C_re": _w(C_re),
            "C_im": _w(C_im),
            "log_dt": _w(log_dt),
            "Dskip": _w(Dskip),
        }
    _A_in = _A_setup()

    def _B_setup():
        B, S, D, H = 1, 2048, 576, 32
        Dh = D // H
        return {
            "x": _w((lambda *s: torch.randn(*s, dtype=torch.bfloat16) * 0.05)(B, S, D)),
            "wqkv": _w((lambda *s: torch.randn(*s, dtype=torch.bfloat16) * 1.6)(D, 3 * D)),
            "w_phi": _w((lambda *s: torch.randn(*s, dtype=torch.bfloat16) * 1.6)(H, Dh, Dh) * (Dh ** -0.5)),
            "wo": _w((lambda *s: torch.randn(*s, dtype=torch.bfloat16) * 0.05)(D, D)),
        }
    _B_in = _B_setup()

    return {
        "A_x": _A_in["x"],
        "A_Lambda_re": _A_in["Lambda_re"],
        "A_Lambda_im": _A_in["Lambda_im"],
        "A_B_re": _A_in["B_re"],
        "A_B_im": _A_in["B_im"],
        "A_C_re": _A_in["C_re"],
        "A_C_im": _A_in["C_im"],
        "A_log_dt": _A_in["log_dt"],
        "A_Dskip": _A_in["Dskip"],
        "B_x": _B_in["x"],
        "B_wqkv": _B_in["wqkv"],
        "B_w_phi": _B_in["w_phi"],
        "B_wo": _B_in["wo"],
        "gate_w": _w((lambda *s: torch.randn(*s, dtype=torch.bfloat16) * 0.05)(576) * 16.0),
    }

def reference(A_x, A_Lambda_re, A_Lambda_im, A_B_re, A_B_im, A_C_re, A_C_im, A_log_dt, A_Dskip, B_x, B_wqkv, B_w_phi, B_wo, gate_w):
    def _A_ref(x, Lambda_re, Lambda_im, B_re, B_im, C_re, C_im, log_dt, Dskip):
        Bsz, L, H = x.shape
        Lam = Lambda_re + 1j * Lambda_im
        Bmat = B_re + 1j * B_im
        Cmat = C_re + 1j * C_im
        dt = torch.exp(log_dt)
        Lam_bar = torch.exp(dt * Lam)
        B_bar = ((Lam_bar - 1.0) / Lam)[:, None] * Bmat
        Bu = torch.einsum("bld,pd->blp", x + 0j, B_bar)
        h = torch.zeros_like(Bu[:, 0, :])
        hs = []
        for t in range(L):
            h = Lam_bar[None, :] * h + Bu[:, t, :]
            hs.append(h)
        hseq = torch.stack(hs, 1)
        y = 2.0 * torch.einsum("blp,dp->bld", hseq, Cmat).real + x * Dskip[None, None, :]
        return y

    def _B_ref(x, wqkv, w_phi, wo):
        B, S, D = x.shape
        H = 32; Dh = D // H
        qkv = (lambda x, *d: x.permute(*d))((x @ wqkv).reshape(B, S, 3, H, Dh), 2, 0, 3, 1, 4)
        q, k, v = qkv[0], qkv[1], qkv[2]
        pq = torch.einsum("bhsd,hdf->bhsf", q, w_phi)
        pk = torch.einsum("bhsd,hdf->bhsf", k, w_phi)
        phi_q = torch.concatenate([_softmax(pq, axis=-1), _softmax(-pq, axis=-1)], axis=-1)
        phi_k = torch.concatenate([_softmax(pk, axis=-1), _softmax(-pk, axis=-1)], axis=-1)
        kv = torch.einsum("bhsf,bhsd->bhfd", phi_k, v)
        z  = torch.einsum("bhsf->bhf", phi_k)
        num = torch.einsum("bhqf,bhfd->bhqd", phi_q, kv)
        den = torch.einsum("bhqf,bhf->bhq", phi_q, z)[..., None] + 1e-6
        o = num / den
        return (lambda x, *d: x.permute(*d))(o, 0, 2, 1, 3).reshape(B, S, D) @ wo

    x = A_x
    g = _sigmoid((x * gate_w).sum(-1, keepdims=True))
    a = _A_ref(x, A_Lambda_re, A_Lambda_im, A_B_re, A_B_im, A_C_re, A_C_im, A_log_dt, A_Dskip)
    b = _B_ref(x, B_wqkv, B_w_phi, B_wo)
    return g * a + (1 - g) * b
```

```python
class Asm:
    def __init__(self):
        self.lines = []
        self._uid = 0
    def __call__(self, s):
        for l in s.split("\n"):
            l = l.strip()
            if not l: continue
            if l.endswith(":") or l.startswith("."):
                self.lines.append(l)
            else:
                self.lines.append("    " + l)
    def c(self, s):
        self.lines.append("    ; " + s)
    def uid(self, p="L"):
        self._uid += 1
        return f"{p}_{self._uid}"
    def text(self):
        return "\n".join(self.lines) + "\n"

def kernel_header(name):
    return f""".globl {name}
.p2align 8
.type {name},@function
{name}:
"""

def kernel_desc(name, vgpr, sgpr, accum, extra=""):
    return f""".amdhsa_kernel {name}
  .amdhsa_next_free_vgpr {vgpr}
  .amdhsa_next_free_sgpr {sgpr}
  .amdhsa_accum_offset {accum}
  .amdhsa_group_segment_fixed_size 0
  .amdhsa_kernarg_size 136
  .amdhsa_user_sgpr_count 2
  .amdhsa_user_sgpr_kernarg_segment_ptr 1
  .amdhsa_system_sgpr_workgroup_id_x 1
{extra}.end_amdhsa_kernel
"""
```

```python
import sys
from asmlib import *
NAME = "gated_mix__ssm_conv_s5__linear_kernel_hedgehog__prompt"
MB = 1<<20
U_OFF=0; QKV_OFF=16*MB; H_OFF=32*MB; PHI_OFF=48*MB; KV_OFF=80*MB; O_OFF=96*MB
SLOT = dict(x=0, Lre=8, Lim=16, Bre=24, Bim=32, Cre=40, Cim=48, logdt=56, D=64, bx=72, wqkv=80, wphi=88, wo=96, gw=104, out=112, dbg=120, ws=128)
SIZE = dict(x=2048*1152, Lre=1152, Lim=1152, Bre=576*1152, Bim=576*1152, Cre=576*1152, Cim=576*1152, logdt=1152, D=1152, wqkv=576*3456, wphi=32*648, wo=576*1152, gw=1152, out=2048*576*4, ws=256*MB)
def srds(a, names, base=8):
    r = {}
    for i, n in enumerate(names):
        s = base + 4*i
        a(f"s_load_dwordx2 s[{s}:{s+1}], s[0:1], {SLOT[n]}")
        r[n] = f"s[{s}:{s+3}]"
    a("s_waitcnt lgkmcnt(0)")
    for i, n in enumerate(names):
        s = base + 4*i
        a(f"s_mov_b32 s{s+2}, {SIZE[n]}"); a(f"s_mov_b32 s{s+3}, 0x20000")
    return r
def rnd(a, v):
    a(f"v_cvt_pk_bf16_f32 {v}, 0, {v}")

def build(scale=1.0, bias=0.0, nempty=0, mimic=True):
    kernels = []
    def R(a, v):
        if mimic: rnd(a, v)
    a = Asm(); n = "k1_kernel"
    a("s_cmp_ge_u32 s2, 6"); a("s_cbranch_scc1 L1_end")
    r = srds(a, ["x","Bre","Bim","ws"])
    a("s_mov_b32 s40, s2")
    a("s_cmp_ge_u32 s2, 3"); a("s_cbranch_scc0 L1_a")
    a("s_mov_b32 s12, s16"); a("s_mov_b32 s13, s17"); a("s_sub_u32 s40, s2, 3")
    a("L1_a:")
    a("s_mul_i32 s41, s40, 192"); a("v_add_u32 v1, s41, v0"); a("s_movk_i32 s42, 1152"); a("v_mul_lo_u32 v1, v1, s42")
    a("s_mul_i32 s43, s3, 1152"); a("v_mov_b32 v2, s43"); a("v_mov_b32 v3, 0"); a("s_mov_b32 s44, 0"); a("s_mov_b32 s45, 0xffff0000")
    a("L1_loop:")
    a(f"buffer_load_dword v4, v2, {r['x']}, s44 offen"); a(f"buffer_load_dword v5, v1, {r['Bre']}, s44 offen")
    a("s_waitcnt vmcnt(0)")
    a("v_lshlrev_b32 v6, 16, v4"); a("v_lshlrev_b32 v7, 16, v5"); a("v_fmac_f32 v3, v6, v7")
    a("v_and_b32 v6, s45, v4"); a("v_and_b32 v7, s45, v5"); a("v_fmac_f32 v3, v6, v7")
    a("s_add_u32 s44, s44, 4"); a("s_cmp_lt_u32 s44, 1152"); a("s_cbranch_scc1 L1_loop")
    a("s_mul_i32 s43, s3, 1152"); a("s_mul_i32 s41, s2, 192"); a("s_add_u32 s43, s43, s41"); a("v_add_u32 v1, s43, v0"); a("v_lshlrev_b32 v1, 2, v1")
    a(f"s_mov_b32 s46, {U_OFF}")
    a(f"buffer_store_dword v3, v1, {r['ws']}, s46 offen")
    a("L1_end:"); a("s_endpgm")
    kernels.append((n, a, (6,2048,1), 192))
    a = Asm(); n = "k2_kernel"
    a("s_cmp_ge_u32 s2, 9"); a("s_cbranch_scc1 L2_end")
    r = srds(a, ["x","wqkv","ws"])
    a("s_mul_i32 s41, s2, 192"); a("v_add_u32 v1, s41, v0"); a("v_lshlrev_b32 v1, 1, v1")
    a("s_mul_i32 s43, s3, 1152"); a("v_mov_b32 v2, s43"); a("v_mov_b32 v3, 0"); a("s_mov_b32 s44, 0"); a("s_mov_b32 s47, 0"); a("s_mov_b32 s45, 0xffff0000")
    a("L2_loop:")
    a(f"buffer_load_dword v4, v2, {r['x']}, s44 offen"); a(f"buffer_load_ushort v5, v1, {r['wqkv']}, s47 offen"); a(f"buffer_load_ushort v8, v1, {r['wqkv']}, s47 offen offset:3456")
    a("s_waitcnt vmcnt(0)")
    a("v_lshlrev_b32 v6, 16, v4"); a("v_lshlrev_b32 v7, 16, v5"); a("v_fmac_f32 v3, v6, v7")
    a("v_and_b32 v6, s45, v4"); a("v_lshlrev_b32 v7, 16, v8"); a("v_fmac_f32 v3, v6, v7")
    a("s_add_u32 s47, s47, 6912")
    a("s_add_u32 s44, s44, 4"); a("s_cmp_lt_u32 s44, 1152"); a("s_cbranch_scc1 L2_loop")
    R(a, "v3")
    a("s_mul_i32 s43, s3, 1728"); a("s_add_u32 s43, s43, s41"); a("v_add_u32 v1, s43, v0"); a("v_lshlrev_b32 v1, 2, v1")
    a(f"s_mov_b32 s46, {QKV_OFF}")
    a(f"buffer_store_dword v3, v1, {r['ws']}, s46 offen")
    a("L2_end:"); a("s_endpgm")
    kernels.append((n, a, (9,2048,1), 192))
    a = Asm(); n = "k3_kernel"
    a("s_cmp_ge_u32 s2, 9"); a("s_cbranch_scc1 L3_end")
    r = srds(a, ["Lre","Lim","logdt","ws"])
    a("s_mul_i32 s41, s2, 64"); a("v_add_u32 v1, s41, v0"); a("v_lshlrev_b32 v2, 1, v1")
    a(f"buffer_load_ushort v4, v2, {r['Lre']}, 0 offen"); a(f"buffer_load_ushort v5, v2, {r['Lim']}, 0 offen"); a(f"buffer_load_ushort v6, v2, {r['logdt']}, 0 offen")
    a("s_waitcnt vmcnt(0)")
    a("v_lshlrev_b32 v4, 16, v4"); a("v_lshlrev_b32 v5, 16, v5"); a("v_lshlrev_b32 v6, 16, v6")
    a("v_mul_f32 v6, 0x3fb8aa3b, v6"); a("v_exp_f32 v6, v6"); a("s_nop 0"); rnd(a, "v6")
    a("v_mul_f32 v7, v6, v4"); a("v_mul_f32 v8, v6, v5")
    a("v_mul_f32 v7, 0x3fb8aa3b, v7"); a("v_exp_f32 v7, v7")
    a("v_mul_f32 v8, 0.15915494, v8"); a("v_fract_f32 v8, v8"); a("v_sin_f32 v9, v8"); a("v_cos_f32 v10, v8"); a("s_nop 0")
    a("v_mul_f32 v11, v7, v10"); a("v_mul_f32 v12, v7, v9")
    a("v_add_f32 v13, -1.0, v11")
    a("v_mul_f32 v14, v4, v4"); a("v_fmac_f32 v14, v5, v5"); a("v_rcp_f32 v14, v14")
    a("v_mul_f32 v15, v13, v4"); a("v_fmac_f32 v15, v12, v5")
    a("v_mul_f32 v16, v12, v4"); a("v_fma_f32 v16, -v13, v5, v16")
    a("v_mul_f32 v15, v15, v14"); a("v_mul_f32 v16, v16, v14")
    a("v_mov_b32 v20, 0"); a("v_mov_b32 v21, 0")
    a("v_lshlrev_b32 v2, 2, v1"); a(f"s_mov_b32 s44, {U_OFF}"); a(f"s_mov_b32 s45, {H_OFF}"); a("s_mov_b32 s46, 0")
    a("L3_loop:")
    for u in range(8):
        a(f"s_add_u32 s47, s44, {u*4608}")
        a(f"buffer_load_dword v{30+2*u}, v2, {r['ws']}, s47 offen"); a(f"buffer_load_dword v{31+2*u}, v2, {r['ws']}, s47 offen offset:2304")
    a("s_waitcnt vmcnt(0)")
    for u in range(8):
        ur, ui = f"v{30+2*u}", f"v{31+2*u}"
        a(f"v_mul_f32 v24, v15, {ur}"); a(f"v_fma_f32 v24, -v16, {ui}, v24")
        a(f"v_mul_f32 v25, v15, {ui}"); a(f"v_fmac_f32 v25, v16, {ur}")
        a(f"v_fmac_f32 v24, v11, v20"); a(f"v_fma_f32 v24, -v12, v21, v24")
        a(f"v_fmac_f32 v25, v11, v21"); a(f"v_fmac_f32 v25, v12, v20")
        a(f"v_mov_b32 v20, v24"); a(f"v_mov_b32 v21, v25")
        a(f"v_mov_b32 v{50+2*u}, v24"); a(f"v_mov_b32 v{51+2*u}, v25")
        a(f"s_add_u32 s47, s45, {u*4608}")
        a(f"buffer_store_dword v{50+2*u}, v2, {r['ws']}, s47 offen"); a(f"buffer_store_dword v{51+2*u}, v2, {r['ws']}, s47 offen offset:2304")
    a("s_waitcnt vmcnt(0)")
    a(f"s_add_u32 s44, s44, {8*4608}"); a(f"s_add_u32 s45, s45, {8*4608}")
    a("s_add_u32 s46, s46, 8"); a("s_cmp_lt_u32 s46, 2048"); a("s_cbranch_scc1 L3_loop")
    a("L3_end:"); a("s_endpgm")
    kernels.append((n, a, (9,1,1), 64))
    a = Asm(); n = "k4_kernel"
    a("s_cmp_ge_u32 s2, 1"); a("s_cbranch_scc1 L4_end")
    r = srds(a, ["wphi","ws"])
    a("v_and_b32 v1, 31, v0"); a("v_lshrrev_b32 v2, 5, v0")
    a("v_mul_u32_u24 v3, 648, v1")
    a("v_mul_u32_u24 v4, 72, v0")
    a(f"s_mul_i32 s43, s3, {1728*4}"); a(f"s_add_u32 s43, s43, {QKV_OFF}")
    a("s_mov_b32 s45, 0xffff0000")
    for f in range(18): a(f"v_mov_b32 v{20+f}, 0")
    for d in range(18):
        a(f"buffer_load_dword v5, v4, {r['ws']}, s43 offen offset:{4*d}")
        for i in range(9):
            a(f"buffer_load_dword v{40+i}, v3, {r['wphi']}, 0 offen offset:{36*d+4*i}")
        a("s_waitcnt vmcnt(0)")
        for i in range(9):
            a(f"v_lshlrev_b32 v6, 16, v{40+i}"); a(f"v_fmac_f32 v{20+2*i}, v5, v6")
            a(f"v_and_b32 v6, s45, v{40+i}"); a(f"v_fmac_f32 v{21+2*i}, v5, v6")
    for f in range(18): R(a, f"v{20+f}")
    a("v_mov_b32 v7, v20"); a("v_mov_b32 v8, v20")
    for f in range(1,18):
        a(f"v_max_f32 v7, v7, v{20+f}"); a(f"v_min_f32 v8, v8, v{20+f}")
    a("v_mov_b32 v9, 0"); a("v_mov_b32 v10, 0")
    for f in range(18):
        a(f"v_sub_f32 v{60+f}, v{20+f}, v7"); a(f"v_mul_f32 v{60+f}, 0x3fb8aa3b, v{60+f}"); a(f"v_exp_f32 v{60+f}, v{60+f}")
        a(f"v_sub_f32 v{78+f}, v8, v{20+f}"); a(f"v_mul_f32 v{78+f}, 0x3fb8aa3b, v{78+f}"); a(f"v_exp_f32 v{78+f}, v{78+f}")
        a("s_nop 0")
        a(f"v_add_f32 v9, v9, v{60+f}"); a(f"v_add_f32 v10, v10, v{78+f}")
    a("v_rcp_f32 v9, v9"); a("v_rcp_f32 v10, v10"); a("s_nop 0")
    a("v_mul_u32_u24 v4, 144, v0"); a(f"s_mul_i32 s43, s3, {64*144}"); a(f"s_add_u32 s43, s43, {PHI_OFF}")
    for f in range(36):
        a(f"v_mul_f32 v{60+f}, v{60+f}, {'v9' if f<18 else 'v10'}"); R(a, f"v{60+f}")
        a(f"buffer_store_dword v{60+f}, v4, {r['ws']}, s43 offen offset:{4*f}")
    a("L4_end:"); a("s_endpgm")
    kernels.append((n, a, (1,2048,1), 64))
    a = Asm(); n = "k5_kernel"
    a("s_cmp_ge_u32 s2, 36"); a("s_cbranch_scc1 L5_end")
    r = srds(a, ["ws"])
    a("v_cmp_gt_u32 vcc, 19, v0"); a("s_and_saveexec_b64 s[50:51], vcc")
    a(f"s_add_u32 s40, s3, 32"); a("s_mul_i32 s40, s40, 144"); a("s_lshl_b32 s41, s2, 2"); a("s_add_u32 s40, s40, s41"); a(f"s_add_u32 s40, s40, {PHI_OFF}")
    a(f"s_mul_i32 s42, s3, 72"); a(f"s_add_u32 s42, s42, {QKV_OFF + 1152*4}")
    a("v_lshlrev_b32 v1, 2, v0"); a("v_mov_b32 v2, 0"); a("v_mov_b32 v3, 0"); a("s_mov_b32 s46, 0")
    a("v_cmp_eq_u32 s[52:53], 18, v0")
    a("L5_loop:")
    for u in range(8):
        a(f"s_add_u32 s47, s40, {u*64*144}"); a(f"buffer_load_dword v{10+u}, v2, {r['ws']}, s47 offen")
        a(f"s_add_u32 s47, s42, {u*1728*4}"); a(f"buffer_load_dword v{20+u}, v1, {r['ws']}, s47 offen")
    a("s_waitcnt vmcnt(0)")
    for u in range(8):
        a(f"v_cndmask_b32 v{20+u}, v{20+u}, 1.0, s[52:53]"); a(f"v_fmac_f32 v3, v{10+u}, v{20+u}")
    a(f"s_add_u32 s40, s40, {8*64*144}"); a(f"s_add_u32 s42, s42, {8*1728*4}")
    a("s_add_u32 s46, s46, 8"); a("s_cmp_lt_u32 s46, 2048"); a("s_cbranch_scc1 L5_loop")
    R(a, "v3")
    a("s_mul_i32 s40, s3, 36"); a("s_add_u32 s40, s40, s2"); a("s_mul_i32 s40, s40, 76"); a(f"s_add_u32 s40, s40, {KV_OFF}")
    a(f"buffer_store_dword v3, v1, {r['ws']}, s40 offen")
    a("L5_end:"); a("s_endpgm")
    kernels.append((n, a, (36,32,1), 64))
    a = Asm(); n = "k6_kernel"
    a("s_cmp_ge_u32 s2, 1"); a("s_cbranch_scc1 L6_end")
    r = srds(a, ["ws"])
    a("v_and_b32 v1, 31, v0"); a("v_lshrrev_b32 v2, 5, v0")
    a(f"v_mul_u32_u24 v3, {64*144}, v2"); a("v_mul_u32_u24 v4, 144, v1"); a("v_add_u32 v3, v3, v4")
    a(f"s_mul_i32 s40, s3, {2*64*144}"); a(f"s_add_u32 s40, s40, {PHI_OFF}")
    a(f"v_mul_u32_u24 v4, {36*76}, v1"); a(f"s_mov_b32 s41, {KV_OFF}")
    for d in range(19): a(f"v_mov_b32 v{20+d}, 0")
    for f in range(36):
        a(f"buffer_load_dword v5, v3, {r['ws']}, s40 offen offset:{4*f}")
        for d in range(19): a(f"buffer_load_dword v{40+d}, v4, {r['ws']}, s41 offen offset:{76*f+4*d}")
        a("s_waitcnt vmcnt(0)")
        for d in range(19): a(f"v_fmac_f32 v{20+d}, v5, v{40+d}")
    for d in range(19): R(a, f"v{20+d}")
    a("v_add_f32 v38, 0x358637bd, v38"); R(a, "v38"); a("v_rcp_f32 v38, v38"); a("s_nop 0")
    a("v_mul_u32_u24 v4, 72, v0"); a(f"s_mul_i32 s40, s3, {2*576*4}"); a(f"s_add_u32 s40, s40, {O_OFF}")
    for d in range(18):
        a(f"v_mul_f32 v{20+d}, v{20+d}, v38"); R(a, f"v{20+d}")
        a(f"buffer_store_dword v{20+d}, v4, {r['ws']}, s40 offen offset:{4*d}")
    a("L6_end:"); a("s_endpgm")
    kernels.append((n, a, (1,1024,1), 64))
    a = Asm(); n = "k7_kernel"
    a("s_cmp_ge_u32 s2, 3"); a("s_cbranch_scc1 L7_end")
    r = srds(a, ["x","Cre","Cim","wo","gw","D","ws","out"])
    a("s_mul_i32 s41, s2, 192"); a("v_add_u32 v1, s41, v0")
    a("s_movk_i32 s42, 1152"); a("v_mul_lo_u32 v2, v1, s42")
    a("v_lshlrev_b32 v3, 1, v1")
    a("v_mov_b32 v4, 0")
    a("v_mov_b32 v10, 0"); a("v_mov_b32 v11, 0"); a("v_mov_b32 v12, 0")
    a(f"s_mul_i32 s43, s3, 4608"); a(f"s_add_u32 s43, s43, {H_OFF}")
    a(f"s_mul_i32 s44, s3, 2304"); a(f"s_add_u32 s44, s44, {O_OFF}")
    a(f"s_mul_i32 s45, s3, 1152")
    a("s_mov_b32 s46, 0"); a("s_mov_b32 s47, 0")
    a("L7_loop:")
    a(f"buffer_load_dword v20, v4, {r['ws']}, s43 offen"); a(f"buffer_load_dword v21, v4, {r['ws']}, s43 offen offset:2304")
    a(f"buffer_load_dword v22, v4, {r['ws']}, s44 offen")
    a(f"buffer_load_ushort v23, v2, {r['Cre']}, s46 offen"); a(f"buffer_load_ushort v24, v2, {r['Cim']}, s46 offen")
    a(f"buffer_load_ushort v25, v3, {r['wo']}, s47 offen")
    a(f"buffer_load_ushort v26, v4, {r['x']}, s45 offen"); a(f"buffer_load_ushort v27, v4, {r['gw']}, s46 offen")
    a("s_waitcnt vmcnt(0)")
    for v in (23,24,25,26,27): a(f"v_lshlrev_b32 v{v}, 16, v{v}")
    a("v_fmac_f32 v10, v20, v23"); a("v_fma_f32 v10, -v21, v24, v10"); a("v_fmac_f32 v11, v22, v25")
    a("v_mul_f32 v26, v26, v27"); R(a, "v26"); a("v_add_f32 v12, v12, v26")
    a("s_add_u32 s43, s43, 4"); a("s_add_u32 s44, s44, 4"); a("s_add_u32 s45, s45, 2"); a("s_add_u32 s47, s47, 1152")
    a("s_add_u32 s46, s46, 2"); a("s_cmp_lt_u32 s46, 1152"); a("s_cbranch_scc1 L7_loop")
    a(f"s_mul_i32 s45, s3, 1152")
    a(f"buffer_load_ushort v26, v3, {r['x']}, s45 offen"); a(f"buffer_load_ushort v27, v3, {r['D']}, 0 offen")
    a("s_waitcnt vmcnt(0)")
    a("v_lshlrev_b32 v26, 16, v26"); a("v_lshlrev_b32 v27, 16, v27"); a("v_mul_f32 v26, v26, v27"); R(a, "v26")
    a("v_fma_f32 v10, 2.0, v10, v26")
    R(a, "v11"); R(a, "v12")
    a("v_mul_f32 v12, 0xbfb8aa3b, v12"); a("v_exp_f32 v12, v12"); a("s_nop 0"); a("v_add_f32 v12, 1.0, v12"); a("v_rcp_f32 v12, v12"); a("s_nop 0"); R(a, "v12")
    a("v_sub_f32 v13, 1.0, v12"); R(a, "v13"); a("v_mul_f32 v13, v13, v11"); R(a, "v13")
    a("v_mul_f32 v10, v12, v10"); a("v_add_f32 v10, v10, v13")
    import struct
    f2h = lambda f: "0x%08x" % struct.unpack("<I", struct.pack("<f", f))[0]
    if scale != 1.0: a(f"v_mul_f32 v10, {f2h(scale)}, v10")
    if bias != 0.0: a(f"v_add_f32 v10, {f2h(bias)}, v10")
    a("v_lshlrev_b32 v1, 2, v1"); a("s_mul_i32 s45, s3, 2304")
    a(f"buffer_store_dword v10, v1, {r['out']}, s45 offen")
    a("L7_end:"); a("s_endpgm")
    kernels.append((n, a, (3,2048,1), 192))
    a = Asm(); a("s_endpgm")
    empty = ("empty_kernel", a, (256,1,1), 256)
    txt = ""
    for n, a, g, b in kernels: txt += f"; @launch kernel={n} grid=({g[0]},{g[1]},{g[2]}) block=({b},1,1) lds=0\n"
    for i in range(nempty): txt += f"; @launch kernel=empty_kernel grid=(256,1,1) block=(256,1,1) lds=0\n"
    if nempty: kernels.append(empty)
    txt += ".amdgcn_target \"amdgcn-amd-amdhsa--gfx950\"\n.text\n"
    for n, a, g, b in kernels: txt += kernel_header(n) + a.text()
    txt += ".section .rodata,\"a\"\n"
    for n, a, g, b in kernels: txt += ".p2align 6\n" + kernel_desc(n, 104, 64, 104, "  .amdhsa_system_sgpr_workgroup_id_y 1\n  .amdhsa_float_denorm_mode_32 3\n")
    return txt
if __name__ == "__main__":
    open(f"cdna_kernels/{NAME}.s", "w").write(build())
    open(f"naive_e50.s", "w").write(build(nempty=50))
    open(f"naive_nomimic.s", "w").write(build(mimic=False))
    open(f"naive_s101.s", "w").write(build(scale=1.01))
    open(f"naive_s103.s", "w").write(build(scale=1.03))
    open(f"naive_b003.s", "w").write(build(bias=0.003))
```

```python
import re
REG_RE = re.compile(r'\b([vas])\[(\d+):(\d+)\]|\b([vas])(\d+)\b|\b(vcc|exec|m0|scc)\b')
def regs_of(op):
    out = set()
    for m in REG_RE.finditer(op):
        if m.group(1):
            for i in range(int(m.group(2)), int(m.group(3)) + 1): out.add(m.group(1) + str(i))
        elif m.group(4): out.add(m.group(4) + m.group(5))
        else: out.add(m.group(6))
    return out
TRANS = ("v_exp_f32", "v_log_f32", "v_rcp_f32", "v_rsq_f32", "v_sqrt_f32", "v_sin_f32", "v_cos_f32")
class I:
    __slots__ = ("t", "k", "mn", "rd", "wr", "tok", "srcc", "srcab", "dpp", "raw", "wide")
    def __init__(self, t, k=None, tok=None, raw=False):
        self.t = t; self.tok = tok; self.raw = raw
        self.rd = set(); self.wr = set(); self.srcc = set(); self.srcab = set(); self.dpp = False; self.wide = set()
        if k is not None:
            self.k = k; self.mn = k; return
        body = t.split(";")[0].strip()
        sp = body.split(None, 1)
        mn = sp[0]; self.mn = mn
        rest = sp[1] if len(sp) > 1 else ""
        ops = []; depth = 0; cur = ""
        for ch in rest:
            if ch in "[(": depth += 1
            if ch in "])": depth -= 1
            if ch == "," and depth == 0: ops.append(cur.strip()); cur = ""
            else: cur += ch
        if cur.strip(): ops.append(cur.strip())
        mods = ""
        if ops:
            l = ops[-1].split(None, 1)
            if len(l) > 1: ops[-1] = l[0]; mods = l[1]
        R = [regs_of(o) for o in ops]
        if mn.endswith(":") or mn.startswith("."):
            self.k = "label"
        elif mn.startswith("v_mfma"):
            self.k = "mfma"; self.wr = R[0]; self.srcab = R[1] | R[2]; self.srcc = R[3]; self.rd = self.srcab | self.srcc
        elif mn.startswith("v_"):
            self.k = "valu"; self.wr = set(R[0])
            for r in R[1:]: self.rd |= r
            if mn.startswith(("v_fmac", "v_pk_fmac")) or "_dpp" in mn: self.rd |= R[0]
            if "permlane" in mn: self.wr |= R[1]; self.rd |= R[0]
            if "_dpp" in mn: self.dpp = True
            if mn.startswith("v_cndmask") and len(ops) == 3: self.rd.add("vcc")
            if "_co_" in mn: self.wr |= R[1]
        elif mn.startswith("ds_read"):
            self.k = "ds"; self.wr = R[0]; self.rd = R[1]
        elif mn.startswith("ds_"):
            self.k = "ds"
            for r in R: self.rd |= r
        elif mn.startswith(("buffer_load", "global_load")):
            self.k = "vm"
            if re.search(r"\blds\b", mods):
                for r in R: self.rd |= r
                self.rd.add("m0")
            else:
                self.wr = R[0]
                for r in R[1:]: self.rd |= r
        elif mn.startswith(("buffer_store", "buffer_atomic")):
            self.k = "vm"
            for r in R: self.rd |= r
            if mn.endswith(("x3", "x4")): self.wide = R[0]
        elif mn.startswith(("s_load", "s_memtime", "s_memrealtime")):
            self.k = "smem"; self.wr = R[0]
            for r in R[1:]: self.rd |= r
        elif mn in ("s_waitcnt", "s_barrier", "s_nop", "s_endpgm", "s_sleep", "s_setprio") or mn.startswith(("s_branch", "s_cbranch")):
            self.k = "ctl"
        elif mn.startswith("s_cmp"):
            self.k = "salu"
            for r in R: self.rd |= r
        elif mn.startswith("s_"):
            self.k = "salu"; self.wr = set(R[0])
            for r in R[1:]: self.rd |= r
            if "saveexec" in mn: self.wr.add("exec")
        else:
            raise ValueError("unknown instr " + t)

class Stream:
    def __init__(self): self.b = []; self._open = None
    def __call__(self, s, raw=False):
        last = None
        for l in s.split("\n"):
            l = l.strip()
            if not l: continue
            last = I(l, raw=raw)
            if self._open is not None: self._open.append(last)
            else: self.b.append([last])
        return last
    def begin(self): self._open = []
    def end(self): self.b.append(self._open); self._open = None
    def wait(self, *toks):
        fl = []
        for t in toks:
            if isinstance(t, (list, tuple)): fl += list(t)
            elif t is not None: fl.append(t)
        i = I("; wait", k="wait", tok=fl)
        if self._open is not None: self._open.append(i)
        else: self.b.append([i])
    def waitall(self, vm=False, lg=False):
        i = I("; waitall", k="waitall", tok=(vm, lg))
        if self._open is not None: self._open.append(i)
        else: self.b.append([i])
    def c(self, s): self.b.append([I("; " + s, k="comment")])
    def add(self, other): self.b += other.b
    def flat(self): return [i for b in self.b for i in b]

def cost(b):
    c = 0
    for i in b:
        if i.k in ("wait", "waitall", "comment", "label"): continue
        if i.k == "mfma": c += 8
        elif i.mn.startswith(TRANS) or "permlane" in i.mn: c += 8
        else: c += 4
    return c

def merge(main, fill, budget=8, start=0):
    out = Stream(); q = list(fill.b); credit = 0; nm = 0
    for b in main.b:
        out.b.append(b)
        ism = any(i.k == "mfma" for i in b)
        if ism:
            nm += 1
            if nm > start:
                credit += budget
                while q and credit >= cost(q[0]) - 3:
                    f = q.pop(0); credit -= cost(f); out.b.append(f)
        else:
            credit -= cost(b)
            if credit < -16: credit = -16
    out.b += q
    return out

def finalize(stream, mfma_pass=4):
    ins = stream.flat()
    out = []; vm = []; lg = []; smem_out = False
    def emit_wait(nv, nl):
        nonlocal vm, lg, smem_out
        parts = []
        if nv is not None:
            nv = min(nv, 63); parts.append(f"vmcnt({nv})"); vm = vm[len(vm)-nv:] if nv else []
        if nl is not None:
            if any(x.k == "smem" for x in lg): nl = 0
            nl = min(nl, 15); parts.append(f"lgkmcnt({nl})"); lg = lg[len(lg)-nl:] if nl else []
        if parts: out.append(I("s_waitcnt " + " ".join(parts)))
    for i in ins:
        if i.raw:
            out.append(i); continue
        if i.k == "wait":
            nv = nl = None
            for t in i.tok:
                if t in vm:
                    n = len(vm) - 1 - vm.index(t); nv = n if nv is None else min(nv, n)
                if t in lg:
                    n = len(lg) - 1 - lg.index(t); nl = n if nl is None else min(nl, n)
            emit_wait(nv, nl); continue
        if i.k == "waitall":
            emit_wait(0 if (i.tok[0] and vm) else None, 0 if (i.tok[1] and lg) else None); continue
        if i.k in ("comment", "label"):
            out.append(i); continue
        nv = nl = None
        touch = i.rd | i.wr
        for idx, o in enumerate(vm):
            t = i.rd if i.k == "vm" else touch
            if o.wr & t: nv = len(vm) - 1 - idx
        for idx, o in enumerate(lg):
            t = i.rd if (i.k == "ds" and o.k == "ds") else touch
            if o.wr & t: nl = len(lg) - 1 - idx
        emit_wait(nv, nl)
        if i.k == "vm":
            if len(vm) >= 63: emit_wait(62, None)
            vm.append(i)
        if i.k in ("ds", "smem"): lg.append(i)
        out.append(i)
    res = []; hist = []
    pos = 0
    P = {4: dict(rw=8, ab=8, cov=6, war=3), 8: dict(rw=12, ab=12, cov=10, war=7)}[mfma_pass]
    def isv(r): return r[0] in "va" and r[1:].isdigit()
    for i in out:
        if i.k in ("comment", "label") or i.raw:
            res.append(i); continue
        need = 0
        for (p, pp) in hist:
            d = pos - pp - 1
            req = 0
            if p.k == "valu":
                vw = {r for r in p.wr if isv(r)}
                sw = {r for r in p.wr if not isv(r)}
                if i.k == "mfma" and vw & i.rd: req = max(req, 2)
                if i.k == "valu":
                    if (i.dpp or "permlane" in i.mn) and vw & i.rd: req = max(req, 2)
                    if i.mn.startswith(("v_readlane", "v_readfirstlane")) and vw & i.rd: req = max(req, 1)
                    if p.mn.startswith(TRANS) and not i.mn.startswith(TRANS) and vw & i.rd: req = max(req, 1)
                    if sw & i.rd: req = max(req, 2)
                if i.k == "vm" and sw & i.rd: req = max(req, 5)
                if i.k in ("salu", "ctl") and sw and (sw & i.rd or i.mn.startswith("s_cbranch_vcc")): req = max(req, 1)
            if p.k == "mfma":
                if i.k == "mfma":
                    if p.wr & i.srcab: req = max(req, P["ab"])
                    if p.wr & i.srcc and p.wr != i.srcc: req = max(req, P["cov"])
                    if p.wr & i.wr and not (p.wr & i.srcc): req = max(req, P["cov"])
                elif i.k in ("valu", "vm", "ds"):
                    if p.wr & (i.rd | i.wr): req = max(req, P["rw"])
                    if i.k == "valu" and p.srcc & i.wr: req = max(req, P["war"])
            if p.k == "salu" and "m0" in p.wr and "m0" in i.rd and i.k == "vm": req = max(req, 1)
            if p.k == "vm" and p.wide and p.wide & i.wr: req = max(req, 2)
            need = max(need, req - d)
        while need > 0:
            n = min(need, 16); res.append(I(f"s_nop {n-1}")); pos += n; need -= n
        res.append(i)
        hist.append((i, pos))
        if i.mn == "s_nop": pos += int(i.t.split()[1]) + 1
        else: pos += 1
        hist = [(p, pp) for (p, pp) in hist if pos - pp < 24]
    txt = []
    for i in res:
        if i.k == "label" or (i.raw and i.t.endswith(":")): txt.append(i.t)
        else: txt.append("    " + i.t)
    return "\n".join(txt) + "\n"

class Blk:
    def __init__(self, q, off=0): self.q = q; self.off = off
    def __add__(self, k): return Blk(self.q, self.off + k)
    __radd__ = __add__
    def __sub__(self, k): return Blk(self.q, self.off - k)
    def res(self, n):
        assert (self.off % 4) + n <= 4, (self.off, n)
        return self.q[self.off // 4] + self.off % 4
class Alloc:
    def __init__(self, pfx, lo, hi):
        self.p = pfx; self.free = set(range(lo, hi)); self.hw = 0; self.minfree = 999
    def _get(self, n, align, rev):
        for s in sorted(self.free, reverse=rev):
            if s % align == 0 and all((s + k) in self.free for k in range(n)):
                for k in range(n): self.free.discard(s + k)
                self.hw = max(self.hw, s + n); self.minfree = min(self.minfree, len(self.free))
                return s
        raise RuntimeError(f"out of {self.p} regs for {n}; free={len(self.free)}")
    def get(self, n=1, align=1):
        if n > 4 and self.p != "s":
            return Blk([self._get(4, 4, True) for _ in range((n + 3) // 4)])
        if n >= 2 and align == 1: align = 2
        if n > 2: align = 4
        return self._get(n, align, False)
    def rel(self, s, n=1):
        if isinstance(s, Blk):
            for q in s.q: self.rel(q, 4)
            return
        for k in range(n):
            assert (s + k) not in self.free, (self.p, s + k)
            self.free.add(s + k)
def r(p, s, n=1):
    if isinstance(s, Blk): s = s.res(n)
    return f"{p}{s}" if n == 1 else f"{p}[{s}:{s+n-1}]"
def v(s, n=1): return r("v", s, n)
def a(s, n=1): return r("a", s, n)
def s_(s, n=1): return r("s", s, n)
```

```python
import sys
from gf import *
NAME = "gated_mix__ssm_conv_s5__linear_kernel_hedgehog__prompt"
F0_OFF=0x1000; FH_OFF=0x10000; FO_OFF=0x20000; AGG_OFF=0x30000; KVP_OFF=0x80000
WP_OFF=0x200000; WPQ=92160; AH_OFF=0x400000; AO_OFF=0x900000; ST_OFF=0x1000000
WS_SIZE=0x10000000
OOB=0x40000000
R_X=0; R_B=49152; R_W1=79872; R_M=141312; LDS_TOTAL=163840
PK=0; PKP=240
WQ_L=30720
KVA=67584; KVAP=208
AG=R_M; AGP=320
GT=R_M+5120
SCR=R_M+5632
SCRP=4224
PQP=176
PARTP=336
LOG2E=0x3fb8aa3b
SPIN=200000

class K:
    def __init__(self, stamps=False, rot=(0,0,0), stop=None):
        self.stamps = stamps; self.rot = rot; self.stop = stop
        self.V = Alloc("v", 1, 256); self.A = Alloc("a", 0, 256); self.S = Alloc("s", 82, 102)
        self.tail = Stream(); self.nst = 0; self.stnames = []
    def stamp(self, g, name):
        if not self.stamps: return
        g.begin()
        g(f"s_memtime s[{self.sT}:{self.sT+1}]"); g.waitall(lg=True)
        g(f"v_writelane_b32 {v(self.vST)}, s{self.sT}, {self.nst}")
        g.end()
        self.stnames.append(name); self.nst += 1

    def build(self):
        g = Stream(); V = self.V; A = self.A; S = self.S
        SX, SBRE, SBIM, SB3, SWQ, SWPHI, SWS, SC, SWO, SOUT, SAG = [s_(4*i, 4) for i in range(1, 12)]
        self.SWS = SWS
        g("s_cmp_ge_u32 s2, 256"); g("s_cbranch_scc1 L_end")
        g("s_load_dwordx16 s[48:63], s[0:1], 0"); g("s_load_dwordx16 s[64:79], s[0:1], 64"); g("s_load_dwordx2 s[80:81], s[0:1], 128")
        if self.stamps:
            self.sT = S.get(2); self.vST = V.get()
            g(f"v_mov_b32 {v(self.vST)}, 0")
            g(f"s_memrealtime s[{self.sT}:{self.sT+1}]"); g.waitall(lg=True); g(f"v_writelane_b32 {v(self.vST)}, s{self.sT}, 62")
            self.stamp(g, "start")
        sC, sJ, sW, sTH, sCG, sTAG, sT0, sT1, sT2, sT3 = [S.get() for _ in range(10)]
        vL, vN, vG = V.get(), V.get(), V.get()
        t = [V.get() for _ in range(8)]
        g("s_getpc_b64 s[44:45]")
        g(f"v_lshlrev_b32 {v(t[0])}, 7, v0")
        g(f"global_load_dword {v(t[1])}, {v(t[0])}, s[44:45]")
        g(f"v_lshrrev_b32 {v(t[2])}, 6, v0"); g(f"v_and_b32 {v(vL)}, 63, v0")
        g(f"v_readfirstlane_b32 s{sW}, {v(t[2])}")
        g(f"v_and_b32 {v(vN)}, 15, {v(vL)}"); g(f"v_lshrrev_b32 {v(vG)}, 4, {v(vL)}")
        g(f"s_and_b32 s{sT0}, s2, 7"); g(f"s_lshr_b32 s{sT1}, s2, 3")
        g(f"s_and_b32 s{sC}, s{sT0}, 1"); g(f"s_lshl_b32 s{sC}, s{sC}, 3"); g(f"s_and_b32 s{sT2}, s{sT1}, 7"); g(f"s_add_u32 s{sC}, s{sC}, s{sT2}")
        g(f"s_lshr_b32 s{sT2}, s{sT0}, 1"); g(f"s_lshr_b32 s{sT3}, s{sT1}, 3")
        g(f"s_lshl_b32 s{sJ}, s{sT2}, 2"); g(f"s_add_u32 s{sJ}, s{sJ}, s{sT3}")
        g(f"s_and_b32 s{sTH}, s{sT2}, 1"); g(f"s_lshr_b32 s{sCG}, s{sT2}, 1"); g(f"s_lshl_b32 s{sCG}, s{sCG}, 2"); g(f"s_add_u32 s{sCG}, s{sCG}, s{sT3}")
        sROT = S.get()
        g(f"s_mul_i32 s{sROT}, s{sT0}, {self.rot[0]}"); g(f"s_mul_i32 s{sT2}, s{sC}, {self.rot[1]}"); g(f"s_add_u32 s{sROT}, s{sROT}, s{sT2}")
        g(f"s_mul_i32 s{sT2}, s{sJ}, {self.rot[2]}"); g(f"s_add_u32 s{sROT}, s{sROT}, s{sT2}")
        g(f"s_mul_i32 s{sT2}, s{sROT}, 7282"); g(f"s_lshr_b32 s{sT2}, s{sT2}, 16"); g(f"s_mul_i32 s{sT2}, s{sT2}, 9"); g(f"s_sub_u32 s{sROT}, s{sROT}, s{sT2}")
        vX = [V.get() for _ in range(4)]; vBre, vBim, vB3 = V.get(), V.get(), V.get()
        u_, sl_, sw_ = t[2], t[3], t[4]
        g(f"v_lshrrev_b32 {v(u_)}, 3, {v(vL)}"); g(f"v_and_b32 {v(sl_)}, 7, {v(vL)}")
        g(f"v_lshrrev_b32 {v(sw_)}, 1, {v(u_)}"); g(f"v_xor_b32 {v(sw_)}, {v(sw_)}, {v(sl_)}"); g(f"v_lshlrev_b32 {v(sw_)}, 4, {v(sw_)}")
        g(f"v_mul_u32_u24 {v(vBre)}, 1152, {v(u_)}"); g(f"v_add_u32 {v(vBre)}, {v(vBre)}, {v(sw_)}"); g(f"v_xor_b32 {v(vBim)}, 64, {v(vBre)}")
        g(f"v_lshrrev_b32 {v(t[5])}, 2, {v(u_)}"); g(f"v_mul_u32_u24 {v(t[5])}, 4608, {v(t[5])}")
        g(f"v_add_u32 {v(vX[0])}, {v(vBre)}, {v(t[5])}"); g(f"v_add_u32 {v(vX[1])}, {v(vBim)}, {v(t[5])}")
        g(f"v_add_u32 {v(vX[2])}, {4608-2048}, {v(vX[0])}"); g(f"v_add_u32 {v(vX[3])}, {16*1152+4608-3072}, {v(vX[1])}"); g(f"v_add_u32 {v(vX[1])}, {16*1152-1024}, {v(vX[1])}")
        g(f"v_xor_b32 {v(t[5])}, 2, {v(sl_)}"); g(f"v_lshlrev_b32 {v(t[5])}, 4, {v(t[5])}")
        g(f"s_cmp_eq_u32 s{sW}, 1"); g("s_cselect_b64 vcc, -1, 0"); g(f"v_cndmask_b32 {v(vB3)}, {v(vBre)}, {v(vBim)}, vcc")
        g(f"s_cmp_ge_u32 s{sW}, 2"); g("s_cselect_b64 vcc, -1, 0"); g(f"v_cndmask_b32 {v(vB3)}, {v(vB3)}, {v(t[5])}, vcc")
        sE3 = S.get(2)
        g(f"s_cselect_b32 s{sE3}, 0xff, -1"); g(f"s_mov_b32 s{sE3+1}, 0")
        g.waitall(lg=True)
        def srd(S4, p, size):
            b = int(S4[2:].split(":")[0])
            g(f"s_mov_b64 s[{b}:{b+1}], s[{p}:{p+1}]"); g(f"s_mov_b32 s{b+2}, {size}"); g(f"s_mov_b32 s{b+3}, 0x20000")
        srd(SWQ, 68, 576*3456); srd(SWPHI, 70, 32*648); srd(SWS, 80, WS_SIZE); srd(SX, 48, 2048*1152); srd(SBRE, 54, 576*1152); srd(SBIM, 56, 576*1152)
        early = [3, 48, 49, 66, 67, 68, 69, 70, 71, 78, 79]
        for x in early: S.free.add(x)
        sPS, sPP = S.get(), S.get()
        g(f"s_lshl_b32 s{sT0}, s{sC}, 2"); g(f"s_add_u32 s{sT0}, s{sT0}, s{sW}")
        g(f"s_mul_i32 s{sPS}, s{sT0}, 43"); g(f"s_lshr_b32 s{sPS}, s{sPS}, 7"); g(f"s_mul_i32 s{sT1}, s{sPS}, 3"); g(f"s_sub_u32 s{sPP}, s{sT0}, s{sT1}")
        sINA = S.get()
        g(f"s_cmp_ge_u32 s{sT0}, 54"); g(f"s_cselect_b32 s{sINA}, {OOB}, 0"); g(f"s_cselect_b32 s{sPS}, 0, s{sPS}")
        g(f"v_mul_u32_u24 {v(t[2])}, 52, {v(vL)}"); g(f"v_lshrrev_b32 {v(t[2])}, 8, {v(t[2])}")
        g(f"v_mul_u32_u24 {v(t[3])}, {3456-80}, {v(t[2])}"); g(f"v_lshl_add_u32 {v(t[3])}, {v(vL)}, 4, {v(t[3])}")
        g(f"v_or_b32 {v(t[3])}, s{sINA}, {v(t[3])}")
        g(f"v_cmp_gt_u32 vcc, 40, {v(vL)}"); g(f"v_mov_b32 {v(t[5])}, {OOB}"); g(f"v_cndmask_b32 {v(t[4])}, {v(t[5])}, {v(t[3])}, vcc")
        g(f"s_add_u32 s{sT1}, s{sPP}, 1"); g(f"s_cmp_eq_u32 s{sT1}, 3"); g(f"s_cselect_b32 s{sT1}, 0, s{sT1}"); g(f"s_mul_i32 s{sT1}, s{sT1}, 1152")
        g(f"s_mul_i32 s{sT2}, s{sPS}, {32*3456}"); g(f"s_add_u32 s{sT1}, s{sT1}, s{sT2}"); g(f"s_mul_i32 s{sT2}, s{sJ}, 72"); g(f"s_add_u32 s{sT1}, s{sT1}, s{sT2}")
        sSCR = S.get()
        g(f"s_mul_i32 s{sSCR}, s{sW}, {SCRP}"); g(f"s_add_u32 s{sSCR}, s{sSCR}, {SCR}")
        sPSC = S.get()
        g(f"s_lshl_b32 s{sPSC}, s{sW}, 13"); g(f"s_add_u32 s{sPSC}, s{sPSC}, {R_W1}")
        pl = []
        for i in range(3):
            g(f"s_add_u32 m0, s{sPSC}, {960*i}")
            pl.append(g(f"buffer_load_dwordx4 {v(t[3] if i < 2 else t[4])}, {SWQ}, s{sT1} offen lds"))
            if i < 2: g(f"s_add_u32 s{sT1}, s{sT1}, {12*3456}")
        g(f"s_cmp_eq_u32 s{sPP}, 1"); g(f"s_cselect_b32 s{sT2}, {OOB}, s{sINA}")
        g(f"v_lshlrev_b32 {v(t[6])}, 4, {v(vL)}"); g(f"v_or_b32 {v(t[6])}, s{sT2}, {v(t[6])}")
        g(f"v_cmp_gt_u32 vcc, 17, {v(vL)}"); g(f"v_cndmask_b32 {v(t[7])}, {v(t[5])}, {v(t[6])}, vcc")
        g(f"s_mul_i32 s{sT2}, s{sJ}, 1296"); g(f"s_add_u32 m0, s{sPSC}, 3072")
        pl.append(g(f"buffer_load_dwordx4 {v(t[6])}, {SWPHI}, s{sT2} offen lds"))
        pl.append(g(f"buffer_load_dwordx4 {v(t[7])}, {SWPHI}, s{sT2} offen offset:1024 lds"))
        vEP = V.get(); vZ = V.get()
        g(f"v_mov_b32 {v(vZ)}, 0")
        g(f"buffer_load_dword {v(vEP)}, {v(vZ)}, {SWS}, 0 offen sc1")
        sCH1, sCH2 = S.get(), S.get()
        g(f"s_and_b32 s{sT0}, s{sJ}, 1"); g(f"s_mul_i32 s{sCH2}, s{sJ}, 36"); g(f"s_lshl_b32 s{sT2}, s{sT0}, 2"); g(f"s_add_u32 s{sCH1}, s{sCH2}, s{sT2}")
        g(f"s_cmp_eq_u32 s{sT0}, 0"); g(f"s_cselect_b32 s{sT2}, 32, 0"); g(f"s_add_u32 s{sCH2}, s{sCH2}, s{sT2}")
        pr = [V.get() for _ in range(3)]
        g(f"s_sub_u32 s{sT2}, s{sCH2}, 32")
        g(f"v_add_u32 {v(t[2])}, s{sCH1}, {v(vL)}"); g(f"v_add_u32 {v(t[3])}, s{sT2}, {v(vL)}")
        g(f"v_cmp_gt_u32 vcc, 32, {v(vL)}"); g(f"v_cndmask_b32 {v(t[2])}, {v(t[3])}, {v(t[2])}, vcc")
        g(f"v_min_u32 {v(t[2])}, 575, {v(t[2])}"); g(f"v_lshlrev_b32 {v(t[2])}, 1, {v(t[2])}")
        g(f"global_load_ushort {v(pr[0])}, {v(t[2])}, s[50:51]"); g(f"global_load_ushort {v(pr[1])}, {v(t[2])}, s[52:53]"); g(f"global_load_ushort {v(pr[2])}, {v(t[2])}, s[62:63]")
        g(f"s_cmp_eq_u32 s{sW}, 1"); g("s_cselect_b64 s[16:17], s[56:57], s[54:55]")
        g(f"s_cmp_ge_u32 s{sW}, 2"); g("s_cselect_b64 s[16:17], s[74:75], s[16:17]"); g(f"s_mov_b32 s18, {576*1152}"); g("s_cselect_b32 s18, 1152, s18"); g("s_mov_b32 s19, 0x20000")
        g("s_cselect_b64 s[32:33], s[60:61], s[58:59]"); g(f"s_mov_b32 s34, {576*1152}"); g("s_mov_b32 s35, 0x20000")
        srd(SWO, 72, 576*1152); srd(SOUT, 76, 2048*576*4); srd(SAG, 80, WS_SIZE)
        for x in list(range(48, 64)) + list(range(66, 82)):
            if x not in early: S.free.add(x)
        sSL = [S.get() for _ in range(9)]
        g(f"s_lshl_b32 s{sSL[0]}, s{sROT}, 7")
        for it in range(1, 9):
            g(f"s_add_u32 s{sSL[it]}, s{sSL[it-1]}, 128"); g(f"s_cmp_eq_u32 s{sSL[it]}, 1152"); g(f"s_cselect_b32 s{sSL[it]}, 0, s{sSL[it]}")
        S.rel(sROT)
        sXB, sBB, sB3B, sM3, sXM, sBM = [S.get() for _ in range(6)]
        g(f"s_lshl_b32 s{sXB}, s{sC}, 2"); g(f"s_add_u32 s{sXB}, s{sXB}, s{sW}"); g(f"s_mul_i32 s{sXB}, s{sXB}, {32*1152}")
        g(f"s_lshl_b32 s{sBB}, s{sW}, 3"); g(f"s_add_u32 s{sBB}, s{sBB}, s{sCH1}"); g(f"s_mul_i32 s{sBB}, s{sBB}, 1152")
        g(f"s_mul_i32 s{sB3B}, s{sCH2}, 1152"); g(f"s_cmp_ge_u32 s{sW}, 2"); g(f"s_cselect_b32 s{sB3B}, 0, s{sB3B}")
        g(f"s_lshl_b32 s{sM3}, s{sW}, 3"); g(f"s_add_u32 s{sM3}, s{sM3}, 64"); g(f"s_add_u32 s{sT0}, s{sW}, 66"); g(f"s_cmp_ge_u32 s{sW}, 2"); g(f"s_cselect_b32 s{sM3}, s{sT0}, s{sM3}")
        g(f"s_lshl_b32 s{sM3}, s{sM3}, 7"); g(f"s_add_u32 s{sM3}, s{sM3}, {R_B}")
        g(f"s_lshl_b32 s{sXM}, s{sW}, 12"); g(f"s_lshl_b32 s{sBM}, s{sW}, 11"); g(f"s_add_u32 s{sBM}, s{sBM}, {R_B}")
        def slab_dma(g, it):
            ring = it % 3; toks = []
            g.begin(); g(f"s_add_u32 s{sT0}, s{sXB}, s{sSL[it]}"); g(f"s_add_u32 m0, s{sXM}, {R_X + ring*16384}")
            for i in range(4): toks.append(g(f"buffer_load_dwordx4 {v(vX[i])}, {SX}, s{sT0} offen offset:{1024*i} lds"))
            g.end()
            g.begin(); g(f"s_add_u32 s{sT0}, s{sBB}, s{sSL[it]}"); g(f"s_add_u32 m0, s{sBM}, {ring*10240}")
            toks.append(g(f"buffer_load_dwordx4 {v(vBre)}, {SBRE}, s{sT0} offen lds"))
            g(f"s_add_u32 m0, s{sBM}, {ring*10240+1024}")
            toks.append(g(f"buffer_load_dwordx4 {v(vBim)}, {SBIM}, s{sT0} offen lds"))
            g(f"s_add_u32 s{sT0}, s{sB3B}, s{sSL[it]}"); g(f"s_add_u32 m0, s{sM3}, {ring*10240}"); g(f"s_mov_b64 exec, s[{sE3}:{sE3+1}]")
            toks.append(g(f"buffer_load_dwordx4 {v(vB3)}, {SB3}, s{sT0} offen lds"))
            g("s_mov_b64 exec, -1"); g.end()
            return toks
        slab = {}
        slab[0] = slab_dma(g, 0); slab[1] = slab_dma(g, 1)
        self.stamp(g, "issued")
        vFX0, vFX1, vFB0, vFB1, vL16 = [V.get() for _ in range(5)]
        g(f"v_lshrrev_b32 {v(t[2])}, 1, {v(vN)}"); g(f"v_xor_b32 {v(t[2])}, {v(t[2])}, {v(vG)}"); g(f"v_lshlrev_b32 {v(t[2])}, 4, {v(t[2])}")
        g(f"v_lshl_add_u32 {v(t[2])}, {v(vN)}, 7, {v(t[2])}")
        vF0 = V.get(); g(f"v_mov_b32 {v(vF0)}, {v(t[2])}")
        g(f"v_add_u32 {v(vFX0)}, s{sXM}, {v(t[2])}"); g(f"v_xor_b32 {v(vFX1)}, 64, {v(vFX0)}")
        g(f"v_add_u32 {v(vFB0)}, {R_B}, {v(t[2])}"); g(f"v_xor_b32 {v(vFB1)}, 64, {v(vFB0)}")
        g(f"v_lshlrev_b32 {v(vL16)}, 4, {v(vL)}")
        g.c("prep")
        pA0 = [V.get(4, 2) for _ in range(2)]; pA1 = [V.get(4, 2) for _ in range(2)]
        pB0 = [V.get(4, 2) for _ in range(3)]; pB1 = [V.get(4, 2) for _ in range(3)]
        pH = V.get(12, 2); pD = V.get(24, 2)
        f0 = t[2]; aA = t[3]; aB0 = t[4]; aB1 = t[5]
        g(f"v_lshrrev_b32 {v(t[6])}, 3, {v(vN)}"); g(f"v_and_b32 {v(t[7])}, 3, {v(vN)}"); g(f"v_lshl_add_u32 {v(f0)}, {v(t[6])}, 2, {v(t[7])}")
        g(f"s_lshl_b32 s{sT0}, s{sPP}, 1"); g(f"v_subrev_u32 {v(f0)}, s{sT0}, {v(f0)}")
        g(f"s_add_u32 s{sT0}, s{sPSC}, 3072"); g(f"v_lshl_add_u32 {v(aB1)}, {v(f0)}, 1, s{sT0}")
        g(f"v_mul_u32_u24 {v(aB0)}, 288, {v(vG)}"); g(f"v_add_u32 {v(aB0)}, {v(aB0)}, {v(aB1)}")
        g(f"v_lshrrev_b32 {v(t[6])}, 2, {v(vN)}"); g(f"v_lshl_add_u32 {v(aA)}, {v(t[6])}, 3, {v(t[7])}"); g(f"v_mul_u32_u24 {v(aA)}, 80, {v(aA)}")
        g(f"v_add_u32 {v(aA)}, s{sPSC}, {v(aA)}")
        vTOK = V.get()
        g(f"v_lshl_add_u32 {v(vTOK)}, {v(t[6])}, 3, {v(t[7])}")
        aA0 = V.get(); g(f"v_lshl_add_u32 {v(aA0)}, {v(vG)}, 4, {v(aA)}")
        mA, mB, mC = S.get(2), S.get(2), S.get(2)
        g(f"v_and_b32 {v(t[6])}, 1, {v(t[6])}")
        g(f"v_cmp_eq_u32 s[{mC}:{mC+1}], 1, {v(t[6])}")
        g(f"v_cmp_le_u32 vcc, 3, {v(vG)}"); g(f"s_xnor_b64 s[{mA}:{mA+1}], vcc, s[{mC}:{mC+1}]")
        g(f"v_cmp_le_u32 vcc, 2, {v(vG)}"); g(f"s_xnor_b64 s[{mB}:{mB+1}], vcc, s[{mC}:{mC+1}]")
        for m in range(2):
            for k in range(4): g(f"v_mov_b32 {v(pA1[m]+k)}, 0")
        for nu in range(3):
            g(f"v_mov_b32 {v(pB1[nu]+2)}, 0"); g(f"v_mov_b32 {v(pB1[nu]+3)}, 0")
        idA, idV = V.get(), V.get()
        g(f"v_cmp_le_u32 vcc, 18, {v(vL)}"); g(f"v_mul_u32_u24 {v(idA)}, 38, {v(vL)}"); g(f"v_subrev_u32 {v(idV)}, 36, {v(idA)}"); g(f"v_cndmask_b32 {v(idA)}, {v(idA)}, {v(idV)}, vcc")
        g(f"v_add_u32 {v(idA)}, s{sT0}, {v(idA)}"); g(f"v_mov_b32 {v(idV)}, 0x3f80")
        g.wait(pl)
        g.begin(); g(f"s_cmp_eq_u32 s{sPP}, 1"); g("s_cselect_b32 exec_lo, -1, 0"); g("s_cselect_b32 exec_hi, 15, 0")
        g(f"ds_write_b16 {v(idA)}, {v(idV)}"); g("s_mov_b64 exec, 0xffff")
        for m in range(2): g(f"ds_read_b64 {v(pA1[m], 2)}, {v(aA)} offset:{320*m+64}")
        g("s_mov_b64 exec, -1"); g.end()
        for m in range(2): g(f"ds_read_b128 {v(pA0[m], 4)}, {v(aA0)} offset:{320*m}")
        for nu in range(3):
            lo = [pB0[nu]+k for k in range(4)] + [pB1[nu], pB1[nu]+1]
            hi = [pH + (nu % 2)*6 + k for k in range(6)]
            for k in range(6):
                ad, base = (aB0, 72*k) if k < 4 else (aB1, 36*32 + 72*(k-4))
                g(f"ds_read_u16 {v(lo[k])}, {v(ad)} offset:{base + 16*nu}"); g(f"ds_read_u16 {v(hi[k])}, {v(ad)} offset:{base + 36 + 16*nu}")
            for k in range(6):
                mk = mA if k == 0 else (mB if k < 4 else mC)
                g(f"v_lshl_or_b32 {v(lo[k])}, {v(hi[k])}, 16, {v(lo[k])}"); g(f"v_cndmask_b32 {v(lo[k])}, 0, {v(lo[k])}, s[{mk}:{mk+1}]")
        for nu in range(3):
            for m in range(2):
                d = pD + (nu*2+m)*4
                g(f"v_mfma_f32_16x16x32_bf16 {v(d,4)}, {v(pA0[m],4)}, {v(pB0[nu],4)}, 0")
        for nu in range(3):
            for m in range(2):
                d = pD + (nu*2+m)*4
                g(f"v_mfma_f32_16x16x32_bf16 {v(d,4)}, {v(pA1[m],4)}, {v(pB1[nu],4)}, {v(d,4)}")
        sWP = S.get()
        g(f"s_lshl_b32 s{sWP}, s{sJ}, 17"); g(f"s_add_u32 s{sWP}, s{sWP}, {WP_OFF}")
        pst = []
        g(f"v_or_b32 {v(t[6])}, s{sINA}, {v(vL16)}"); g(f"v_mov_b32 {v(t[7])}, {OOB}")
        for nu in range(3):
            o = pH + 4*nu
            for m in range(2):
                d = pD + (nu*2+m)*4
                g(f"v_cvt_pk_bf16_f32 {v(o+2*m)}, {v(d)}, {v(d+1)}"); g(f"v_cvt_pk_bf16_f32 {v(o+2*m+1)}, {v(d+2)}, {v(d+3)}")
            g(f"v_add_u32 {v(idA)}, {8*nu}, {v(f0)}"); g(f"v_cmp_gt_u32 vcc, 18, {v(idA)}"); g(f"v_cndmask_b32 {v(pB0[nu])}, {v(t[7])}, {v(t[6])}, vcc")
            g(f"s_lshl_b32 s{sT0}, s{sPP}, 1"); g(f"s_add_u32 s{sT0}, s{sT0}, {nu}")
            g(f"s_mul_i32 s{sT1}, s{sPS}, 5"); g(f"s_add_u32 s{sT1}, s{sT1}, s{sT0}")
            g(f"s_lshl_b32 s{sT2}, s{sPS}, 1"); g(f"s_add_u32 s{sT2}, s{sT2}, s{sT0}"); g(f"s_add_u32 s{sT2}, s{sT2}, 85")
            g(f"s_cmp_ge_u32 s{sT0}, 5"); g(f"s_cselect_b32 s{sT1}, s{sT2}, s{sT1}"); g(f"s_lshl_b32 s{sT1}, s{sT1}, 10"); g(f"s_add_u32 s{sT1}, s{sT1}, s{sWP}")
            pst.append(g(f"buffer_store_dwordx4 {v(o,4)}, {v(pB0[nu])}, {SWS}, s{sT1} offen sc1"))
        for x in pA0 + pA1 + pB0 + pB1: V.rel(x, 4)
        V.rel(pD, 24); V.rel(idA); V.rel(idV); V.rel(aA0)
        for x in (mA, mB, mC): S.rel(x, 2)
        for x in (sPS, sPP, sINA, sPSC): S.rel(x)
        self.stamp(g, "prep")
        g(f"v_readfirstlane_b32 s{sTAG}, {v(vEP)}"); g(f"s_mul_i32 s{sTAG}, s{sTAG}, 0x9E3779B1"); g(f"s_add_u32 s{sTAG}, s{sTAG}, 0x7F4A7C15")
        vTAG = vEP; g(f"v_mov_b32 {v(vTAG)}, s{sTAG}")
        g.c("ssm consts")
        cL8, cLw, cL128 = V.get(2), V.get(2), V.get(2)
        ct = V.get(4, 4)
        for x in pr: g(f"v_lshlrev_b32 {v(x)}, 16, {v(x)}")
        dt, aa, th_ = t[2], t[3], t[4]
        g(f"v_mul_f32 {v(dt)}, {LOG2E}, {v(pr[2])}"); g(f"v_exp_f32 {v(dt)}, {v(dt)}"); g(f"v_cvt_pk_bf16_f32 {v(dt)}, 0, {v(dt)}")
        g(f"v_mul_f32 {v(aa)}, {v(dt)}, {v(pr[0])}"); g(f"v_mul_f32 {v(aa)}, {LOG2E}, {v(aa)}")
        g(f"v_mul_f32 {v(th_)}, {v(dt)}, {v(pr[1])}"); g(f"v_mul_f32 {v(th_)}, 0.15915494, {v(th_)}")
        def cpow(dst, mul):
            g(f"v_mul_f32 {v(t[5])}, {mul}, {v(aa)}"); g(f"v_mul_f32 {v(t[6])}, {mul}, {v(th_)}")
            g(f"v_rndne_f32 {v(t[7])}, {v(t[6])}"); g(f"v_sub_f32 {v(t[6])}, {v(t[6])}, {v(t[7])}")
            g(f"v_exp_f32 {v(t[5])}, {v(t[5])}"); g(f"v_cos_f32 {v(dst)}, {v(t[6])}"); g(f"v_sin_f32 {v(dst+1)}, {v(t[6])}")
            g(f"v_mul_f32 {v(dst)}, {v(dst)}, {v(t[5])}"); g(f"v_mul_f32 {v(dst+1)}, {v(dst+1)}, {v(t[5])}")
        cpow(ct, "1.0"); cpow(cL8, "0x41000000"); cpow(cL128, "0x43000000")
        g(f"s_lshl_b32 s{sT0}, s{sW}, 5"); g(f"v_cvt_f32_u32 {v(dt)}, s{sT0}"); cpow(cLw, v(dt))
        g(f"v_add_f32 {v(t[5])}, -1.0, {v(ct)}")
        g(f"v_mul_f32 {v(t[6])}, {v(pr[0])}, {v(pr[0])}"); g(f"v_fmac_f32 {v(t[6])}, {v(pr[1])}, {v(pr[1])}"); g(f"v_rcp_f32 {v(t[6])}, {v(t[6])}")
        g(f"v_mul_f32 {v(ct+2)}, {v(t[5])}, {v(pr[0])}"); g(f"v_fmac_f32 {v(ct+2)}, {v(ct+1)}, {v(pr[1])}")
        g(f"v_mul_f32 {v(ct+3)}, {v(ct+1)}, {v(pr[0])}"); g(f"v_fma_f32 {v(ct+3)}, -{v(t[5])}, {v(pr[1])}, {v(ct+3)}")
        g(f"v_mul_f32 {v(ct+2)}, {v(ct+2)}, {v(t[6])}"); g(f"v_mul_f32 {v(ct+3)}, {v(ct+3)}, {v(t[6])}")
        g(f"v_add_u32 {v(t[2])}, s{sSCR}, {v(vL16)}"); g(f"ds_write_b128 {v(t[2])}, {v(ct,4)}")
        cK = V.get(20, 4)
        g(f"v_and_b32 {v(t[3])}, 7, {v(vN)}"); g(f"v_lshl_add_u32 {v(t[3])}, {v(t[3])}, 4, s{sSCR}")
        for i in range(5): g(f"ds_read_b128 {v(cK+4*i,4)}, {v(t[3])} offset:{128*i}")
        g(f"v_cmp_gt_u32 vcc, 8, {v(vN)}"); g(f"v_mov_b32 {v(t[4])}, 0x80000000"); g(f"v_cndmask_b32 {v(t[4])}, 0, {v(t[4])}, vcc")
        for i in range(5):
            g(f"v_xor_b32 {v(cK+4*i+1)}, {v(t[4])}, {v(cK+4*i+1)}"); g(f"v_xor_b32 {v(cK+4*i+3)}, {v(t[4])}, {v(cK+4*i+3)}")
        V.rel(ct, 4); V.rel(pH, 12)
        for x in pr: V.rel(x)
        self.stamp(g, "consts")
        vPOLL, vPV = V.get(), V.get()
        g(f"v_lshlrev_b32 {v(vPOLL)}, 7, {v(vN)}")
        def flag_store(g, base, sMaj, sMin):
            g.begin()
            g(f"s_lshl_b32 s{sT0}, s{sMaj}, 4"); g(f"s_add_u32 s{sT0}, s{sT0}, s{sMin}"); g(f"s_lshl_b32 s{sT0}, s{sT0}, 7"); g(f"s_add_u32 s{sT0}, s{sT0}, {base}")
            g(f"s_cmp_eq_u32 s{sW}, 0"); g(f"s_cselect_b32 s{sT1}, 0, {OOB}"); g(f"v_mov_b32 {v(t[0])}, s{sT1}")
            g("s_mov_b64 exec, 1"); tk = g(f"buffer_store_dword {v(vTAG)}, {v(t[0])}, {SWS}, s{sT0} offen sc1"); g("s_mov_b64 exec, -1")
            g.end(); return tk
        sPB = S.get(); sSP = S.get()
        def poll_issue(g, base, sMaj):
            g.begin(); g(f"s_lshl_b32 s{sPB}, s{sMaj}, 11"); g(f"s_add_u32 s{sPB}, s{sPB}, {base}")
            g(f"buffer_load_dword {v(vPV)}, {v(vPOLL)}, {SWS}, s{sPB} offen sc1"); g.end()
        def poll_check(g, nm):
            g.begin(); g(f"v_cmp_ne_u32 vcc, {v(vPV)}, {v(vTAG)}"); g(f"s_cbranch_vccnz L_spin_{nm}"); g(f"L_back_{nm}:"); g.end()
            T = self.tail
            T(f"L_spin_{nm}:\ns_mov_b32 s{sSP}, 0\nL_loop_{nm}:\nbuffer_load_dword {v(vPV)}, {v(vPOLL)}, {SWS}, s{sPB} offen sc1\ns_add_u32 s{sSP}, s{sSP}, 1\n"
              f"s_waitcnt vmcnt(0)\nv_cmp_ne_u32 vcc, {v(vPV)}, {v(vTAG)}\ns_cmp_gt_u32 s{sSP}, {SPIN}\ns_cbranch_scc1 L_back_{nm}\ns_cbranch_vccnz L_loop_{nm}\ns_branch L_back_{nm}", raw=True)
        g.c("ssm gemm")
        xf = A.get(144, 4)
        XF = lambda st, T: a(xf + (st*2+T)*4, 4)
        accS = V.get(40, 4); AS = lambda T, i: accS + (T*5+i)*4
        fb = V.get(40, 4)
        sWM, sWG = S.get(), S.get()
        g(f"s_mul_i32 s{sWM}, s{sW}, 2560"); g(f"s_add_u32 s{sWG}, s{sWM}, s{sWP}")
        def kv_lds(it): return (R_W1 + it*10240) if it < 6 else (R_X + (it-6)*10240)
        def wkv_dma(g, it):
            toks = []
            g.begin(); g(f"s_mul_i32 s{sT0}, s{sSL[it]}, 80"); g(f"s_add_u32 s{sT0}, s{sT0}, s{sWG}"); g(f"s_add_u32 m0, s{sWM}, {kv_lds(it)}")
            for i in range(2): toks.append(g(f"buffer_load_dwordx4 {v(vL16)}, {SWS}, s{sT0} offen offset:{1024*i} sc1 lds"))
            g("s_mov_b32 exec_hi, 0"); toks.append(g(f"buffer_load_dwordx4 {v(vL16)}, {SWS}, s{sT0} offen offset:2048 sc1 lds")); g("s_mov_b32 exec_hi, -1")
            g.end(); return toks
        def wq_dma(g, it):
            g.begin(); g(f"s_lshl_b32 s{sT0}, s{sSL[it]}, 5"); g(f"s_lshl_b32 s{sT1}, s{sW}, 10"); g(f"s_add_u32 s{sT0}, s{sT0}, s{sT1}"); g(f"s_add_u32 s{sT0}, s{sT0}, s{sWP}")
            g(f"s_add_u32 s{sT0}, s{sT0}, {WPQ}"); g(f"s_add_u32 m0, s{sT1}, {WQ_L + it*4096}")
            tk = g(f"buffer_load_dwordx4 {v(vL16)}, {SWS}, s{sT0} offen sc1 lds"); g.end(); return [tk]
        wkv = {}; wq = {}
        for it in range(9):
            g.wait(slab[it]);
            if it == 2: g.wait(pst)
            g.waitall(lg=True)
            g("s_barrier")
            if it == 2: flag_store(g, F0_OFF, sJ, sC)
            if it + 2 < 9: slab[it+2] = slab_dma(g, it+2)
            if it == 6: poll_issue(g, F0_OFF, sJ)
            if it == 7:
                poll_check(g, "f0")
                for k in range(0, 3): wkv[k] = wkv_dma(g, k)
            if it == 8:
                for k in range(3, 6): wkv[k] = wkv_dma(g, k)
            ring = it % 3
            for ka in range(2):
                for T in range(2): g(f"ds_read_b128 {XF(2*it+ka, T)}, {v(vFX1 if ka else vFX0)} offset:{R_X + ring*16384 + T*2048}")
                for i in range(5): g(f"ds_read_b128 {v(fb+(ka*5+i)*4,4)}, {v(vFB1 if ka else vFB0)} offset:{ring*10240 + i*2048}")
            for ka in range(2):
                for i in range(5):
                    for T in range(2):
                        c_ = "0" if (it == 0 and ka == 0) else v(AS(T,i),4)
                        g(f"v_mfma_f32_16x16x32_bf16 {v(AS(T,i),4)}, {XF(2*it+ka,T)}, {v(fb+(ka*5+i)*4,4)}, {c_}")
            self.stamp(g, f"ssm{it}") if it in (0, 2, 4, 6, 8) else None
        for x in vX + [vB3]: V.rel(x)
        for x in (sXB, sBB, sB3B, sM3, sXM, sBM): S.rel(x)
        S.rel(sE3, 2)
        g.waitall(lg=True); g("s_barrier")
        for k in range(6, 9): wkv[k] = wkv_dma(g, k)
        for k in range(9): wq[k] = wq_dma(g, k)
        z4 = V.get(4, 4)
        for k in range(4): g(f"v_mov_b32 {v(z4+k)}, 0")
        g(f"v_lshlrev_b32 {v(t[2])}, 4, v0"); g(f"v_add_u32 {v(t[2])}, {KVA}, {v(t[2])}")
        g(f"ds_write_b128 {v(t[2])}, {v(z4,4)}"); g(f"ds_write_b128 {v(t[2])}, {v(z4,4)} offset:4096")
        V.rel(z4, 4)
        g.c("gate")
        gt = V.get(8, 4)
        for T in range(2):
            for k in range(4):
                d = gt + T*4 + k
                g(f"v_mul_f32 {v(d)}, 0xbfb8aa3b, {v(AS(T,4)+k)}"); g(f"v_exp_f32 {v(d)}, {v(d)}"); g(f"v_add_f32 {v(d)}, 1.0, {v(d)}"); g(f"v_rcp_f32 {v(d)}, {v(d)}")
        g(f"s_lshl_b32 s{sT0}, s{sW}, 7"); g(f"s_add_u32 s{sT0}, s{sT0}, {GT}"); g(f"v_lshl_add_u32 {v(t[2])}, {v(vG)}, 5, s{sT0}")
        g.begin(); g("s_mov_b32 exec_lo, 0x00100010"); g("s_mov_b32 exec_hi, 0x00100010")
        g(f"ds_write_b128 {v(t[2])}, {v(gt,4)}"); g(f"ds_write_b128 {v(t[2])}, {v(gt+4,4)} offset:16"); g("s_mov_b64 exec, -1"); g.end()
        V.rel(gt, 8)
        g.c("coef + pass1")
        up = V.get(40, 4); UP = lambda T, i: up + (T*5+i)*4
        DPP = "row_ror:8 row_mask:0xf bank_mask:0xf"
        for T in range(2):
            for k in range(4):
                for i in range(5): g(f"v_mul_f32 {v(UP(T,i)+k)}, {v(cK+4*i+2)}, {v(AS(T,i)+k)}")
                for i in range(5): g(f"v_fmac_f32_dpp {v(UP(T,i)+k)}, {v(AS(T,i)+k)}, {v(cK+4*i+3)} {DPP}")
        V.rel(accS, 40)
        pp = V.get(10, 2)
        prev = [UP(0,i) for i in range(5)]
        for st in range(1, 8):
            T, k = st >> 2, st & 3
            cur = [pp + (st & 1)*5 + i for i in range(5)]
            for i in range(5): g(f"v_fma_f32 {v(cur[i])}, {v(cK+4*i)}, {v(prev[i])}, {v(UP(T,i)+k)}")
            for i in range(5): g(f"v_fmac_f32_dpp {v(cur[i])}, {v(prev[i])}, {v(cK+4*i+1)} {DPP}")
            prev = cur
        vAGO = V.get()
        g(f"v_and_b32 {v(t[2])}, 7, {v(vN)}"); g(f"v_lshrrev_b32 {v(t[3])}, 3, {v(vN)}"); g(f"v_lshlrev_b32 {v(t[3])}, 2, {v(t[3])}"); g(f"v_lshl_add_u32 {v(t[2])}, {v(t[2])}, 3, {v(t[3])}")
        g(f"v_mul_u32_u24 {v(vAGO)}, {AGP}, {v(vG)}"); g(f"v_add_u32 {v(vAGO)}, {v(vAGO)}, {v(t[2])}")
        g(f"s_mul_i32 s{sT0}, s{sW}, {4*AGP}"); g(f"s_add_u32 s{sT0}, s{sT0}, {AG}"); g(f"v_add_u32 {v(t[2])}, s{sT0}, {v(vAGO)}")
        for i in range(5): g(f"ds_write_b32 {v(t[2])}, {v(prev[i])} offset:{64*i}")
        V.rel(pp, 10)
        g.waitall(lg=True); g.wait(wkv[0]); g("s_barrier")
        ag = V.get(32, 2); snap = V.get(8, 4); vPW = V.get(2)
        vL8 = V.get(); g(f"v_min_u32 {v(t[2])}, 39, {v(vL)}"); g(f"v_lshlrev_b32 {v(vL8)}, 3, {v(t[2])}"); g(f"v_add_u32 {v(t[2])}, {AG}, {v(vL8)}")
        for sg in range(16): g(f"ds_read_b64 {v(ag+2*sg,2)}, {v(t[2])} offset:{AGP*sg}")
        def cmad(g, dst, Sx, Lx, Ax, tmp):
            g(f"v_pk_fma_f32 {v(tmp,2)}, {v(Sx,2)}, {v(Lx,2)}, {v(Ax,2)} op_sel:[0,0,0] op_sel_hi:[1,0,1]")
            g(f"v_pk_fma_f32 {v(dst,2)}, {v(Sx,2)}, {v(Lx,2)}, {v(tmp,2)} op_sel:[1,1,0] op_sel_hi:[0,1,1] neg_lo:[1,0,0]")
        for sg in range(1, 16):
            cmad(g, ag+2*sg, ag+2*sg-2, cL8, ag+2*sg, ag+2*sg)
        g(f"v_mov_b32 {v(snap)}, {v(ag+30)}"); g(f"v_mov_b32 {v(snap+1)}, {v(ag+31)}"); g(f"v_mov_b32 {v(snap+2)}, {v(vTAG)}"); g(f"v_mov_b32 {v(snap+3)}, {v(vTAG)}")
        vAGL = V.get()
        g(f"v_cmp_gt_u32 vcc, 36, {v(vL)}"); g(f"v_mov_b32 {v(t[3])}, {OOB}"); g(f"v_cndmask_b32 {v(vAGL)}, {v(t[3])}, {v(vL16)}, vcc")
        g(f"s_cmp_eq_u32 s{sW}, 0"); g(f"s_cselect_b32 s{sT1}, 0, {OOB}"); g(f"v_or_b32 {v(t[3])}, s{sT1}, {v(vAGL)}")
        sAGB = S.get()
        g(f"s_lshl_b32 s{sAGB}, s{sJ}, 4"); g(f"s_add_u32 s{sAGB}, s{sAGB}, s{sC}"); g(f"s_lshl_b32 s{sAGB}, s{sAGB}, 10"); g(f"s_add_u32 s{sAGB}, s{sAGB}, {AGG_OFF}")
        g(f"buffer_store_dwordx4 {v(snap,4)}, {v(t[3])}, {SWS}, s{sAGB} offen sc1")
        g(f"v_mov_b32 {v(vPW)}, 0"); g(f"v_mov_b32 {v(vPW+1)}, 0")
        for ww in range(1, 4):
            g.begin(); g(f"s_cmp_eq_u32 s{sW}, {ww}"); g("s_cselect_b64 vcc, -1, 0")
            g(f"v_cndmask_b32 {v(vPW)}, {v(vPW)}, {v(ag+8*ww-2)}, vcc"); g(f"v_cndmask_b32 {v(vPW+1)}, {v(vPW+1)}, {v(ag+8*ww-1)}, vcc"); g.end()
        V.rel(ag, 32); V.rel(snap, 8)
        self.stamp(g, "aggpub")
        g.c("kv gemm")
        accQ = V.get(20, 4); accK = V.get(36, 4); AA = lambda T, tl: (accK + (2*tl+T)*4) if 2*tl+T < 9 else (accQ + (2*tl+T-9)*4)
        vW1 = V.get(); g(f"v_add_u32 {v(vW1)}, {R_W1}, {v(vL16)}")
        for it in range(9):
            if it > 0:
                g.wait(wkv[it]); g("s_barrier")
            for ka in range(2):
                for tl in range(5):
                    if it < 6: g(f"ds_read_b128 {v(fb+(ka*5+tl)*4,4)}, {v(vW1)} offset:{it*10240 + (ka*5+tl)*1024}")
                    else: g(f"ds_read_b128 {v(fb+(ka*5+tl)*4,4)}, {v(vL16)} offset:{kv_lds(it) + (ka*5+tl)*1024}")
            for ka in range(2):
                for tl in range(5):
                    for T in range(2):
                        c_ = "0" if (it == 0 and ka == 0) else v(AA(T,tl),4)
                        g(f"v_mfma_f32_16x16x32_bf16 {v(AA(T,tl),4)}, {v(fb+(ka*5+tl)*4,4)}, {XF(2*it+ka,T)}, {c_}")
        self.stamp(g, "kvgemm")
        V.rel(fb, 40); V.rel(vW1)
        def POS(p): return AA((p >> 2) & 1, p >> 3) + (p & 3)
        def swaps(g, tiles):
            for tl in tiles:
                for k in range(4): g(f"v_permlane32_swap_b32 {v(AA(0,tl)+k)}, {v(AA(1,tl)+k)}")
        sL2E = S.get(2); g(f"s_mov_b32 s{sL2E}, {LOG2E}"); g(f"s_mov_b32 s{sL2E+1}, {LOG2E}")
        def softmax(g, p0, out):
            e = V.get(36, 2); mm = V.get(4, 2)
            vals = [POS(p0+i) for i in range(18)]
            g(f"v_max3_f32 {v(mm)}, {v(vals[0])}, {v(vals[1])}, {v(vals[2])}"); g(f"v_min3_f32 {v(mm+1)}, {v(vals[0])}, {v(vals[1])}, {v(vals[2])}")
            for i in range(3, 17, 2):
                g(f"v_max3_f32 {v(mm)}, {v(mm)}, {v(vals[i])}, {v(vals[i+1])}"); g(f"v_min3_f32 {v(mm+1)}, {v(mm+1)}, {v(vals[i])}, {v(vals[i+1])}")
            g(f"v_max_f32 {v(mm)}, {v(mm)}, {v(vals[17])}"); g(f"v_min_f32 {v(mm+1)}, {v(mm+1)}, {v(vals[17])}")
            g(f"v_pk_mul_f32 {v(mm,2)}, {v(mm,2)}, s[{sL2E}:{sL2E+1}]")
            for i in range(9):
                g(f"v_pk_fma_f32 {v(e+2*i,2)}, {v(vals[2*i],2)}, s[{sL2E}:{sL2E+1}], {v(mm,2)} op_sel:[0,0,0] op_sel_hi:[1,1,0] neg_lo:[0,0,1] neg_hi:[0,0,1]")
                g(f"v_pk_fma_f32 {v(e+18+2*i,2)}, {v(vals[2*i],2)}, s[{sL2E}:{sL2E+1}], {v(mm,2)} op_sel:[0,0,1] op_sel_hi:[1,1,1] neg_lo:[1,0,0] neg_hi:[1,0,0]")
            for i in range(36): g(f"v_exp_f32 {v(e+i)}, {v(e+i)}")
            for h in range(2):
                g(f"v_pk_add_f32 {v(mm+2*h,2)}, {v(e+18*h,2)}, {v(e+18*h+2,2)}")
            for i in range(2, 9):
                for h in range(2): g(f"v_pk_add_f32 {v(mm+2*h,2)}, {v(mm+2*h,2)}, {v(e+18*h+2*i,2)}")
            g(f"v_add_f32 {v(mm)}, {v(mm)}, {v(mm+1)}"); g(f"v_add_f32 {v(mm+1)}, {v(mm+2)}, {v(mm+3)}")
            g(f"v_rcp_f32 {v(mm)}, {v(mm)}"); g(f"v_rcp_f32 {v(mm+1)}, {v(mm+1)}")
            for i in range(18):
                h = i // 9
                g(f"v_pk_mul_f32 {v(e+2*i,2)}, {v(e+2*i,2)}, {v(mm,2)} op_sel:[0,{h}] op_sel_hi:[1,{h}]")
                g(f"v_cvt_pk_bf16_f32 {v(out+i)}, {v(e+2*i)}, {v(e+2*i+1)}")
            V.rel(e, 36); V.rel(mm, 4)
        g.c("k softmax")
        swaps(g, range(5))
        pk = V.get(28, 4)
        softmax(g, 0, pk)
        for i in range(9): g(f"v_cvt_pk_bf16_f32 {v(pk+18+i)}, {v(POS(18+2*i))}, {v(POS(19+2*i))}")
        g(f"v_mov_b32 {v(pk+27)}, 0x3f80")
        V.rel(accK, 36)
        vROW = V.get()
        g(f"v_lshrrev_b32 {v(t[2])}, 1, {v(vG)}"); g(f"v_lshl_add_u32 {v(vROW)}, {v(t[2])}, 4, {v(vN)}"); g(f"s_lshl_b32 s{sT0}, s{sW}, 5"); g(f"v_add_u32 {v(vROW)}, s{sT0}, {v(vROW)}")
        g(f"v_and_b32 {v(t[3])}, 1, {v(vG)}"); g(f"v_mul_u32_u24 {v(t[2])}, {PKP}, {v(vROW)}"); g(f"v_mul_u32_u24 {v(t[4])}, 112, {v(t[3])}"); g(f"v_add_u32 {v(t[2])}, {v(t[2])}, {v(t[4])}")
        g("s_barrier")
        for i in range(7): g(f"ds_write_b128 {v(t[2])}, {v(pk+4*i,4)} offset:{PK + 16*i}")
        V.rel(pk, 28)
        aK, aV = t[5], t[6]
        g(f"v_lshrrev_b32 {v(t[3])}, 2, {v(vN)}"); g(f"v_lshl_add_u32 {v(t[3])}, {v(vG)}, 3, {v(t[3])}"); g(f"v_mul_u32_u24 {v(t[3])}, {PKP}, {v(t[3])}")
        g(f"v_and_b32 {v(t[4])}, 3, {v(vN)}")
        g(f"s_lshr_b32 s{sT0}, s{sW}, 1"); g(f"s_mul_i32 s{sT0}, s{sT0}, 112"); g(f"s_and_b32 s{sT1}, s{sW}, 1"); g(f"s_lshl_b32 s{sT1}, s{sT1}, 5"); g(f"s_add_u32 s{sT1}, s{sT1}, s{sT0}"); g(f"s_add_u32 s{sT1}, s{sT1}, 72")
        g(f"v_mul_u32_u24 {v(aK)}, 24, {v(t[4])}"); g(f"v_add3_u32 {v(aK)}, {v(aK)}, {v(t[3])}, s{sT0}")
        g(f"v_lshl_add_u32 {v(aV)}, {v(t[4])}, 3, {v(t[3])}"); g(f"v_add_u32 {v(aV)}, s{sT1}, {v(aV)}")
        g.waitall(lg=True); g("s_barrier")
        kf = V.get(64, 4); kd = V.get(12, 4)
        for st in range(4):
            for hf in range(2):
                off = PK + (32*st + 4*hf)*PKP
                for m in range(3): g(f"ds_read_b64_tr_b16 {v(kf+st*16+m*4+2*hf,2)}, {v(aK)} offset:{off + 8*m}")
                g(f"ds_read_b64_tr_b16 {v(kf+st*16+12+2*hf,2)}, {v(aV)} offset:{off}")
        for st in range(4):
            for m in range(3):
                c_ = "0" if st == 0 else v(kd+4*m,4)
                g(f"v_mfma_f32_16x16x32_bf16 {v(kd+4*m,4)}, {v(kf+st*16+m*4,4)}, {v(kf+st*16+12,4)}, {c_}")
        V.rel(kf, 64)
        ko = V.get(8, 4)
        g(f"s_and_b32 s{sT1}, s{sW}, 1"); g(f"s_lshl_b32 s{sT1}, s{sT1}, 4"); g(f"v_add_u32 {v(t[2])}, s{sT1}, {v(vN)}")
        g(f"v_mul_u32_u24 {v(t[3])}, 19, {v(vG)}"); g(f"v_add_lshl_u32 {v(t[3])}, {v(t[3])}, {v(t[2])}, 4")
        g(f"v_cmp_gt_u32 vcc, 19, {v(t[2])}"); g(f"v_mov_b32 {v(t[4])}, {OOB}"); g(f"v_cndmask_b32 {v(t[3])}, {v(t[4])}, {v(t[3])}, vcc")
        g(f"v_cmp_gt_u32 vcc, 3, {v(vG)}"); g(f"v_cndmask_b32 {v(t[3])}, {v(t[4])}, {v(t[3])}, vcc")
        sKVB = S.get()
        g(f"s_lshl_b32 s{sKVB}, s{sJ}, 16"); g(f"s_add_u32 s{sKVB}, s{sKVB}, {KVP_OFF}")
        g(f"s_lshl_b32 s{sT0}, s{sC}, 12"); g(f"s_add_u32 s{sT0}, s{sT0}, s{sKVB}"); g(f"s_lshr_b32 s{sT1}, s{sW}, 1"); g(f"s_mul_i32 s{sT1}, s{sT1}, {114*16}"); g(f"s_add_u32 s{sT0}, s{sT0}, s{sT1}")
        for i in range(6): g(f"v_cvt_pk_bf16_f32 {v(ko + (i//3)*4 + i%3)}, {v(kd+2*i)}, {v(kd+2*i+1)}")
        g(f"v_mov_b32 {v(ko+3)}, {v(vTAG)}"); g(f"v_mov_b32 {v(ko+7)}, {v(vTAG)}")
        g(f"buffer_store_dwordx4 {v(ko,4)}, {v(t[3])}, {SWS}, s{sT0} offen sc1"); g(f"buffer_store_dwordx4 {v(ko+4,4)}, {v(t[3])}, {SWS}, s{sT0} offen offset:{57*16} sc1")
        V.rel(kd, 12); V.rel(ko, 8)
        self.stamp(g, "kvpub")
        eg = V.get(60, 4)
        def agg_loads(g, raw=False):
            for u in range(15):
                if not raw: g.begin()
                g(f"s_cmp_ge_u32 s{sC}, {15-u}\ns_cselect_b32 s46, {WS_SIZE}, 0\ns_sub_u32 s{sT0}, s{sAGB}, {(15-u)*1024}\n"
                  f"buffer_load_dwordx3 {v(eg+4*u,3)}, {v(vAGL)}, {SAG}, s{sT0} offen sc1", raw=raw)
                if not raw: g.end()
        def agg_check(g, raw=False):
            g(f"v_mov_b32 {v(t[0])}, 0", raw=raw)
            for u in range(15):
                if not raw: g.begin()
                g(f"s_cmp_ge_u32 s{sC}, {15-u}\ns_cselect_b32 s{sT0}, s{sTAG}, 0\nv_bitop3_b32 {v(t[0])}, {v(t[0])}, {v(eg+4*u+2)}, s{sT0} bitop3:0xf6", raw=raw)
                if not raw: g.end()
        agg_loads(g)
        g.c("q gemm")
        g.wait([wq[k] for k in range(9)][-1]); g("s_barrier")
        vWQ = V.get(); g(f"v_add_u32 {v(vWQ)}, {WQ_L}, {v(vL16)}")
        fb = V.get(32, 4)
        for it in range(9):
            b = fb + (it & 1)*16
            for ka in range(2):
                for tl in range(2): g(f"ds_read_b128 {v(b+(ka*2+tl)*4,4)}, {v(vWQ)} offset:{it*4096 + (ka*2+tl)*1024}")
            for ka in range(2):
                for tl in range(2):
                    for T in range(2):
                        c_ = "0" if (it == 0 and ka == 0) else v(AA(T,5+tl),4)
                        g(f"v_mfma_f32_16x16x32_bf16 {v(AA(T,5+tl),4)}, {v(b+(ka*2+tl)*4,4)}, {XF(2*it+ka,T)}, {c_}")
        V.rel(vWQ); V.rel(fb, 32); A.rel(xf, 144)
        self.stamp(g, "qgemm")
        g.c("carry")
        agg_check(g)
        g.begin(); g(f"v_cmp_ne_u32 vcc, 0, {v(t[0])}"); g("s_and_b32 vcc_hi, vcc_hi, 15"); g("s_cmp_lg_u64 vcc, 0"); g("s_cbranch_scc1 L_spin_ag"); g("L_back_ag:"); g.end()
        T_ = self.tail
        T_(f"L_spin_ag:\ns_mov_b32 s{sSP}, 0\nL_loop_ag:", raw=True); agg_loads(T_, True); T_(f"s_waitcnt vmcnt(0)\ns_add_u32 s{sSP}, s{sSP}, 1", raw=True); agg_check(T_, True)
        T_(f"v_cmp_ne_u32 vcc, 0, {v(t[0])}\ns_cmp_gt_u32 s{sSP}, {SPIN}\ns_cbranch_scc1 L_back_ag\ns_and_b32 vcc_hi, vcc_hi, 15\ns_cmp_lg_u64 vcc, 0\ns_cbranch_scc1 L_loop_ag\ns_branch L_back_ag", raw=True)
        for u in range(1, 15): cmad(g, eg+4*u, eg+4*u-4, cL128, eg+4*u, eg+4*u)
        hs = V.get(8, 2); oa = V.get(6, 2)
        g(f"s_mul_i32 s{sT0}, s{sW}, {4*AGP}"); g(f"s_add_u32 s{sT0}, s{sT0}, {AG}"); g(f"v_add_u32 {v(t[2])}, s{sT0}, {v(vL8)}")
        for k in range(3): g(f"ds_read_b64 {v(oa+2*k,2)}, {v(t[2])} offset:{AGP*k}")
        cmad(g, hs, eg+56, cLw, vPW, hs)
        for k in range(3): cmad(g, hs+2*k+2, hs+2*k, cL8, oa+2*k, hs+2*k+2)
        g(f"v_add_u32 {v(t[2])}, s{sSCR}, {v(vL8)}")
        for k in range(4): g(f"ds_write_b64 {v(t[2])}, {v(hs+2*k,2)} offset:{AGP*k}")
        hin = V.get(5); g(f"v_add_u32 {v(t[3])}, s{sSCR}, {v(vAGO)}")
        for i in range(5): g(f"ds_read_b32 {v(hin+i)}, {v(t[3])} offset:{64*i}")
        V.rel(eg, 60); V.rel(hs, 8); V.rel(oa, 6)
        prev = [hin+i for i in range(5)]
        for st in range(8):
            T, k = st >> 2, st & 3
            for i in range(5): g(f"v_fmac_f32 {v(UP(T,i)+k)}, {v(cK+4*i)}, {v(prev[i])}")
            for i in range(5): g(f"v_fmac_f32_dpp {v(UP(T,i)+k)}, {v(prev[i])}, {v(cK+4*i+1)} {DPP}")
            prev = [UP(T,i)+k for i in range(5)]
        V.rel(hin, 5)
        hp = V.get(20, 4)
        for i in range(5):
            for T in range(2):
                g(f"v_cvt_pk_bf16_f32 {v(hp+4*i+2*T)}, {v(UP(T,i))}, {v(UP(T,i)+1)}"); g(f"v_cvt_pk_bf16_f32 {v(hp+4*i+2*T+1)}, {v(UP(T,i)+2)}, {v(UP(T,i)+3)}")
        V.rel(up, 40); V.rel(cK, 20)
        g("s_barrier")
        sHT = S.get(); g(f"s_mul_i32 s{sHT}, s{sW}, 6400"); g(f"s_add_u32 s{sHT}, s{sHT}, {WQ_L}")
        g(f"v_mul_u32_u24 {v(t[2])}, 80, {v(vN)}"); g(f"v_lshl_add_u32 {v(t[2])}, {v(vG)}, 4, {v(t[2])}"); g(f"v_add_u32 {v(t[2])}, s{sHT}, {v(t[2])}")
        for i in range(5): g(f"ds_write_b128 {v(t[2])}, {v(hp+4*i,4)} offset:{1280*i}")
        g(f"v_lshrrev_b32 {v(t[3])}, 2, {v(vN)}"); g(f"v_and_b32 {v(t[4])}, 3, {v(vN)}")
        g(f"v_mul_u32_u24 {v(t[3])}, 80, {v(t[3])}"); g(f"v_lshl_add_u32 {v(t[3])}, {v(t[4])}, 4, {v(t[3])}"); g(f"v_add_u32 {v(t[3])}, s{sHT}, {v(t[3])}")
        g(f"v_mul_u32_u24 {v(t[4])}, 1280, {v(vG)}"); g(f"v_add_u32 {v(t[4])}, {v(t[4])}, {v(t[3])}")
        g(f"v_and_b32 {v(t[5])}, 1, {v(vG)}"); g(f"v_lshrrev_b32 {v(t[6])}, 1, {v(vG)}")
        g(f"v_lshl_add_u32 {v(t[3])}, {v(t[5])}, 3, {v(t[3])}"); g(f"v_mul_u32_u24 {v(t[7])}, 640, {v(t[6])}"); g(f"v_add_u32 {v(t[3])}, {v(t[3])}, {v(t[7])}")
        for T in range(2):
            for im in range(2):
                for hf in range(2): g(f"ds_read_b64_tr_b16 {v(hp+(T*2+im)*4+2*hf,2)}, {v(t[4])} offset:{(8*im+4*hf)*80 + 8*T}")
        g(f"ds_read_b64_tr_b16 {v(hp+16,2)}, {v(t[3])} offset:{64*80}")
        sOC, sOH = S.get(), S.get()
        g(f"s_lshr_b32 s{sT0}, s{sJ}, 1"); g(f"s_mul_i32 s{sT0}, s{sT0}, 2304"); g(f"s_and_b32 s{sT1}, s{sJ}, 1")
        g(f"s_mul_i32 s{sOC}, s{sT1}, 1280"); g(f"s_add_u32 s{sOC}, s{sOC}, s{sT0}"); g(f"s_lshl_b32 s{sOH}, s{sT1}, 3"); g(f"s_add_u32 s{sOH}, s{sOH}, s{sT0}"); g(f"s_add_u32 s{sOH}, s{sOH}, 1024")
        sTL = S.get(); g(f"s_lshl_b32 s{sTL}, s{sC}, 2"); g(f"s_add_u32 s{sTL}, s{sTL}, s{sW}")
        g(f"s_mul_i32 s{sT2}, s{sTL}, {2*36864}"); g(f"s_add_u32 s{sT2}, s{sT2}, {AH_OFF}")
        hst = []
        for T in range(2):
            for im in range(2):
                g(f"s_add_u32 s{sT0}, s{sT2}, s{sOC}"); g(f"s_add_u32 s{sT0}, s{sT0}, {T*36864 + im*18432}")
                hst.append(g(f"buffer_store_dwordx4 {v(hp+(T*2+im)*4,4)}, {v(vL16)}, {SWS}, s{sT0} offen sc1"))
        g(f"v_mul_u32_u24 {v(t[5])}, 36864, {v(t[5])}"); g(f"v_mul_u32_u24 {v(t[6])}, 18432, {v(t[6])}"); g(f"v_lshlrev_b32 {v(t[7])}, 4, {v(vN)}"); g(f"v_add3_u32 {v(t[5])}, {v(t[5])}, {v(t[6])}, {v(t[7])}")
        g(f"s_add_u32 s{sT0}, s{sT2}, s{sOH}")
        hst.append(g(f"buffer_store_dwordx2 {v(hp+16,2)}, {v(t[5])}, {SWS}, s{sT0} offen sc1"))
        V.rel(hp, 20); S.rel(sHT)
        self.stamp(g, "hpub")
        kg = V.get(64, 4); vKG = V.get()
        g(f"v_lshlrev_b32 {v(t[2])}, 4, v0"); g(f"v_cmp_gt_u32 vcc, 228, v0"); g(f"v_mov_b32 {v(t[3])}, {OOB}"); g(f"v_cndmask_b32 {v(vKG)}, {v(t[3])}, {v(t[2])}, vcc")
        sKM = S.get(2); g(f"s_mov_b64 s[{sKM}:{sKM+1}], vcc")
        def kv_loads(g, raw=False):
            for u in range(16):
                if not raw: g.begin()
                g(f"s_add_u32 s{sT0}, s{sKVB}, {4096*u}\nbuffer_load_dwordx4 {v(kg+4*u,4)}, {v(vKG)}, {SWS}, s{sT0} offen sc1", raw=raw)
                if not raw: g.end()
        def kv_check(g, raw=False):
            g(f"v_xor_b32 {v(t[0])}, {v(kg+3)}, {v(vTAG)}", raw=raw)
            for u in range(1, 16): g(f"v_bitop3_b32 {v(t[0])}, {v(t[0])}, {v(kg+4*u+3)}, {v(vTAG)} bitop3:0xf6", raw=raw)
        kv_loads(g)
        g.c("q softmax")
        swaps(g, (5, 6))
        pq = V.get(20, 4)
        softmax(g, 36, pq)
        g(f"v_mov_b32 {v(pq+18)}, 0"); g(f"v_mov_b32 {v(pq+19)}, 0")
        V.rel(accQ, 20)
        g(f"v_and_b32 {v(t[3])}, 1, {v(vG)}"); g(f"v_mul_u32_u24 {v(t[2])}, {PQP}, {v(vROW)}"); g(f"v_mul_u32_u24 {v(t[4])}, 80, {v(t[3])}"); g(f"v_add_u32 {v(t[2])}, {v(t[2])}, {v(t[4])}")
        for i in range(5): g(f"ds_write_b128 {v(t[2])}, {v(pq+4*i,4)} offset:{PK + 16*i}")
        V.rel(pq, 20)
        qf = V.get(24, 4)
        g(f"s_lshl_b32 s{sT0}, s{sW}, 5"); g(f"v_add_u32 {v(t[2])}, s{sT0}, {v(vN)}"); g(f"v_mul_u32_u24 {v(t[2])}, {PQP}, {v(t[2])}")
        g(f"v_lshl_add_u32 {v(t[3])}, {v(t[3])}, 4, {v(t[2])}")
        g(f"v_lshl_add_u32 {v(t[2])}, {v(vG)}, 4, {v(t[2])}")
        for T in range(2):
            for ka in range(3): g(f"ds_read_b128 {v(qf+(T*3+ka)*4,4)}, {v(t[3] if ka == 2 else t[2])} offset:{PK + 16*PQP*T + 64*ka}")
        omg = V.get(2)
        g(f"s_lshl_b32 s{sT0}, s{sW}, 7"); g(f"s_add_u32 s{sT0}, s{sT0}, {GT}"); g(f"v_lshl_add_u32 {v(t[2])}, {v(vTOK)}, 2, s{sT0}")
        for T in range(2): g(f"ds_read_b32 {v(omg+T)}, {v(t[2])} offset:{16*T}")
        for T in range(2): g(f"v_sub_f32 {v(omg+T)}, 1.0, {v(omg+T)}")
        vKW = V.get()
        g(f"v_mul_u32_u24 {v(t[2])}, 3450, v0"); g(f"v_lshrrev_b32 {v(t[2])}, 16, {v(t[2])}"); g(f"v_mul_u32_u24 {v(t[3])}, 19, {v(t[2])}"); g(f"v_sub_u32 {v(t[3])}, v0, {v(t[3])}")
        g(f"v_mul_u32_u24 {v(t[4])}, 43, {v(t[2])}"); g(f"v_lshrrev_b32 {v(t[4])}, 7, {v(t[4])}"); g(f"v_mul_u32_u24 {v(t[5])}, 3, {v(t[4])}"); g(f"v_sub_u32 {v(t[5])}, {v(t[2])}, {v(t[5])}")
        g(f"v_mul_u32_u24 {v(vKW)}, {KVAP}, {v(t[3])}"); g(f"v_mul_u32_u24 {v(t[5])}, 24, {v(t[5])}"); g(f"v_and_b32 {v(t[6])}, 1, {v(t[4])}"); g(f"v_mul_u32_u24 {v(t[6])}, 12, {v(t[6])}")
        g(f"v_add3_u32 {v(vKW)}, {v(vKW)}, {v(t[5])}, {v(t[6])}"); g(f"v_lshrrev_b32 {v(t[4])}, 1, {v(t[4])}"); g(f"v_mul_u32_u24 {v(t[4])}, {19*KVAP+80}, {v(t[4])}")
        g(f"v_add_u32 {v(vKW)}, {v(vKW)}, {v(t[4])}"); g(f"v_add_u32 {v(vKW)}, {KVA}, {v(vKW)}")
        vKR = V.get(3)
        g(f"s_and_b32 s{sT1}, s{sJ}, 1"); g(f"s_lshl_b32 s{sT0}, s{sT1}, 2")
        def rowaddr(dst, kl):
            g(f"v_cmp_le_u32 vcc, 18, {v(kl)}"); g(f"v_addc_co_u32 {v(kl)}, vcc, 0, {v(kl)}, vcc")
            g(f"v_mul_u32_u24 {v(dst)}, {KVAP}, {v(kl)}"); g(f"v_lshl_add_u32 {v(dst)}, {v(vG)}, 4, {v(dst)}"); g(f"v_add_u32 {v(dst)}, {KVA}, {v(dst)}")
        sHM = [S.get(2) for _ in range(4)]
        for m in range(2):
            g(f"v_add_u32 {v(t[2])}, s{sT0}, {v(vTOK)}")
            if m: g(f"v_add_u32 {v(t[2])}, 4, {v(t[2])}")
            rowaddr(vKR+m, t[2])
        g(f"v_lshl_add_u32 {v(t[2])}, {v(vG)}, 3, s{sT0}")
        for p in range(4): g(f"v_cmp_le_u32 s[{sHM[p]}:{sHM[p]+1}], {18-2*p}, {v(t[2])}")
        g(f"s_cmp_eq_u32 s{sT1}, 0"); g(f"s_cselect_b32 s{sT0}, 33, 0")
        sHE = S.get(2); g(f"s_cselect_b64 s[{sHE}:{sHE+1}], -1, 0")
        g(f"v_lshrrev_b32 {v(t[2])}, 1, {v(vN)}"); g(f"v_and_b32 {v(t[2])}, 2, {v(t[2])}"); g(f"v_and_b32 {v(t[3])}, 1, {v(vN)}"); g(f"v_add3_u32 {v(t[2])}, {v(t[2])}, {v(t[3])}, s{sT0}")
        g(f"v_mul_u32_u24 {v(t[3])}, 19, {v(t[3])}"); g(f"v_add_u32 {v(t[3])}, 18, {v(t[3])}"); g(f"v_and_b32 {v(t[4])}, 2, {v(vN)}"); g(f"v_cmp_eq_u32 vcc, 0, {v(t[4])}")
        g(f"v_cndmask_b32 {v(t[2])}, {v(t[2])}, {v(t[3])}, vcc")
        g(f"v_mul_u32_u24 {v(vKR+2)}, {KVAP}, {v(t[2])}"); g(f"v_lshl_add_u32 {v(vKR+2)}, {v(vG)}, 4, {v(vKR+2)}"); g(f"v_add_u32 {v(vKR+2)}, {KVA}, {v(vKR+2)}")
        self.stamp(g, "qsm")
        g.c("kv reduce")
        kv_check(g)
        g.begin(); g(f"v_cmp_ne_u32 vcc, 0, {v(t[0])}"); g(f"s_and_b64 vcc, vcc, s[{sKM}:{sKM+1}]"); g("s_cbranch_scc1 L_spin_kv"); g("L_back_kv:"); g.end()
        T_(f"L_spin_kv:\ns_mov_b32 s{sSP}, 0\nL_loop_kv:", raw=True); kv_loads(T_, True); T_(f"s_waitcnt vmcnt(0)\ns_add_u32 s{sSP}, s{sSP}, 1", raw=True); kv_check(T_, True)
        T_(f"v_cmp_ne_u32 vcc, 0, {v(t[0])}\ns_cmp_gt_u32 s{sSP}, {SPIN}\ns_cbranch_scc1 L_back_kv\ns_and_b64 vcc, vcc, s[{sKM}:{sKM+1}]\ns_cbranch_scc1 L_loop_kv\ns_branch L_back_kv", raw=True)
        ka_ = V.get(6, 2); kt = V.get(6, 2)
        sMSK = S.get(); g(f"s_mov_b32 s{sMSK}, 0xffff0000")
        for u in range(16):
            d = ka_ if u == 0 else kt
            for k in range(3):
                g(f"v_lshlrev_b32 {v(d+2*k)}, 16, {v(kg+4*u+k)}"); g(f"v_and_b32 {v(d+2*k+1)}, s{sMSK}, {v(kg+4*u+k)}")
            if u:
                for k in range(3): g(f"v_pk_add_f32 {v(ka_+2*k,2)}, {v(ka_+2*k,2)}, {v(kt+2*k,2)}")
        for k in range(3): g(f"v_cvt_pk_bf16_f32 {v(kt+k)}, {v(ka_+2*k)}, {v(ka_+2*k+1)}")
        g.begin(); g(f"s_mov_b64 exec, s[{sKM}:{sKM+1}]")
        for k in range(3): g(f"ds_write_b32 {v(vKW)}, {v(kt+k)} offset:{4*k}")
        g("s_mov_b64 exec, -1"); g.end()
        V.rel(kg, 64); V.rel(ka_, 6); V.rel(kt, 6); V.rel(vKW); V.rel(vKG)
        g.wait(hst); g.waitall(lg=True); g("s_barrier")
        flag_store(g, FH_OFF, sC, sJ)
        af = V.get(36, 4); od = V.get(24, 4)
        for m in range(3):
            for ka in range(3): g(f"ds_read_b128 {v(af+(m*3+ka)*4,4)}, {v(vKR+m)} offset:{64*ka}")
        for ka in range(3):
            for m in (2, 0, 1):
                for T in range(2):
                    c_ = "0" if ka == 0 else v(od+(T*3+m)*4,4)
                    g(f"v_mfma_f32_16x16x32_bf16 {v(od+(T*3+m)*4,4)}, {v(af+(m*3+ka)*4,4)}, {v(qf+(T*3+ka)*4,4)}, {c_}")
        V.rel(af, 36); V.rel(qf, 24); V.rel(vKR, 3)
        oo = V.get(12, 4); sc = V.get(2)
        g(f"s_mul_i32 s{sT2}, s{sTL}, {2*18432}"); g(f"s_add_u32 s{sT2}, s{sT2}, {AO_OFF}")
        g(f"v_lshlrev_b32 {v(t[5])}, 4, {v(vN)}"); g(f"v_lshl_add_u32 {v(t[5])}, {v(vG)}, 2, {v(t[5])}"); g(f"v_cmp_gt_u32 vcc, 2, {v(vG)}"); g(f"v_mov_b32 {v(t[6])}, {OOB}"); g(f"v_cndmask_b32 {v(t[5])}, {v(t[6])}, {v(t[5])}, vcc")
        ost = []
        for T in range(2):
            dn = od + (T*3+2)*4
            for h in range(2):
                g(f"v_add_f32 {v(dn+h)}, 0x358637bd, {v(dn+h)}"); g(f"v_rcp_f32 {v(dn+h)}, {v(dn+h)}")
            g(f"v_pk_mul_f32 {v(dn,2)}, {v(dn,2)}, {v(omg,2)} op_sel:[0,{T}] op_sel_hi:[1,{T}]")
            for p in range(5):
                src = od + T*12 + 2*p if p < 4 else dn + 2
                mk = sHM[p] if p < 4 else sHE
                g(f"v_cndmask_b32 {v(sc)}, {v(dn)}, {v(dn+1)}, s[{mk}:{mk+1}]")
                g(f"v_pk_mul_f32 {v(src,2)}, {v(src,2)}, {v(sc,2)} op_sel:[0,0] op_sel_hi:[1,0]")
                g(f"v_cvt_pk_bf16_f32 {v(oo + (4*T+p if p < 4 else 8+T))}, {v(src)}, {v(src+1)}")
            g(f"s_add_u32 s{sT0}, s{sT2}, s{sOC}"); g(f"s_add_u32 s{sT1}, s{sT2}, s{sOH}")
            if T:
                g(f"s_add_u32 s{sT0}, s{sT0}, 18432"); g(f"s_add_u32 s{sT1}, s{sT1}, 18432")
            ost.append(g(f"buffer_store_dwordx4 {v(oo+4*T,4)}, {v(vL16)}, {SWS}, s{sT0} offen sc1"))
            ost.append(g(f"buffer_store_dword {v(oo+8+T)}, {v(t[5])}, {SWS}, s{sT1} offen sc1"))
        V.rel(od, 24); V.rel(oo, 12); V.rel(sc, 2); V.rel(omg, 2)
        for x in sHM + [sHE, sKM]: S.rel(x, 2)
        g.wait(ost); g("s_barrier")
        flag_store(g, FO_OFF, sC, sJ)
        self.stamp(g, "opub")
        g.c("C staging")
        cf = A.get(180, 4); CF = lambda p, m: a(cf + (p*5+m)*4, 4)
        sCB, sCM = S.get(), S.get()
        g(f"s_mul_i32 s{sCB}, s{sCG}, {72*1152}"); g(f"s_and_b32 s{sT1}, s{sW}, 1")
        sODD = S.get(); g(f"s_mov_b32 s{sODD}, s{sT1}")
        g(f"s_mul_i32 s{sCM}, s{sW}, {2*9216}")
        vC0, vC1 = V.get(), V.get()
        g(f"v_add_u32 {v(vC0)}, s{sCM}, {v(vF0)}"); g(f"v_xor_b32 {v(vC1)}, 64, {v(vC0)}")
        CSH = 4*2*9216
        def c_dma(g, col_s, ldsbase_s, ldsoff, rows0, n):
            toks = []
            for i in range(n):
                rr = rows0 + i
                g.begin(); g(f"s_add_u32 s{sT0}, s{col_s}, {rr*8*1152}"); g(f"s_add_u32 m0, s{ldsbase_s}, {ldsoff + rr*1024}")
                toks.append(g(f"buffer_load_dwordx4 {v(vBim if rr & 1 else vBre)}, {SC}, s{sT0} offen lds")); g.end()
            return toks
        sC2 = S.get(); sC3 = S.get()
        for rnd in range(2):
            toks = []
            for q in range(2):
                g(f"s_mul_i32 s{sC2}, s{sODD}, 640"); g(f"s_add_u32 s{sC2}, s{sC2}, s{sCB}"); g(f"s_add_u32 s{sC2}, s{sC2}, {(rnd*2+q)*128}")
                toks += c_dma(g, sC2, sCM, q*9216, 0, 9)
            if rnd == 0:
                g(f"s_mul_i32 s{sC2}, s{sODD}, {4*8*1152}"); g(f"s_add_u32 s{sC2}, s{sC2}, s{sCB}"); g(f"s_add_u32 s{sC2}, s{sC2}, 512")
                g(f"s_lshr_b32 s{sC3}, s{sW}, 1"); g(f"s_mul_i32 s{sC3}, s{sC3}, 10240"); g(f"s_lshl_b32 s{sT1}, s{sODD}, 12"); g(f"s_add_u32 s{sC3}, s{sC3}, s{sT1}")
                toks += c_dma(g, sC2, sC3, CSH, 0, 5)
            g.wait(toks)
            for q in range(2):
                for ka in range(2):
                    for m in range(5): g(f"ds_read_b128 {CF(rnd*4+q*2+ka, m)}, {v(vC1 if ka else vC0)} offset:{q*9216 + m*2048}")
            g.waitall(lg=True)
        g("s_barrier")
        g(f"s_lshr_b32 s{sC3}, s{sW}, 1"); g(f"s_mul_i32 s{sC3}, s{sC3}, 10240"); g(f"s_add_u32 s{sC3}, s{sC3}, {CSH}"); g(f"s_lshl_b32 s{sT1}, s{sODD}, 6")
        g(f"v_xor_b32 {v(vC0)}, s{sT1}, {v(vF0)}"); g(f"v_add_u32 {v(vC0)}, s{sC3}, {v(vC0)}")
        for m in range(5): g(f"ds_read_b128 {CF(8, m)}, {v(vC0)} offset:{m*2048}")
        g.waitall(lg=True); g("s_barrier")
        self.stamp(g, "cstage")
        g.c("wo staging")
        wfa = A.get(76, 4); wfv = V.get(24, 4)
        def WF(p, m, half=None):
            idx = p*5 + m
            pf, b = ("a", wfa + idx*4) if idx < 19 else ("v", wfv + (idx-19)*4)
            return r(pf, b, 4) if half is None else r(pf, b + 2*half, 2)
        WOP = 24064
        g(f"v_mul_u32_u24 {v(t[2])}, 57, {v(vL)}"); g(f"v_lshrrev_b32 {v(t[2])}, 9, {v(t[2])}")
        g(f"v_mul_u32_u24 {v(t[3])}, {1152-144}, {v(t[2])}"); g(f"v_lshl_add_u32 {v(t[3])}, {v(vL)}, 4, {v(t[3])}")
        g(f"v_cmp_gt_u32 vcc, 54, {v(vL)}"); g(f"v_mov_b32 {v(t[4])}, {OOB}"); g(f"v_cndmask_b32 {v(t[4])}, {v(t[4])}, {v(t[3])}, vcc")
        g(f"s_lshr_b32 s{sC2}, s{sW}, 1"); g(f"s_mul_i32 s{sC2}, s{sC2}, 9"); g(f"s_lshl_b32 s{sT1}, s{sODD}, 2"); g(f"s_add_u32 s{sC2}, s{sC2}, s{sT1}")
        sST0 = S.get(); g(f"s_mov_b32 s{sST0}, s{sC2}")
        g(f"s_mul_i32 s{sC2}, s{sC2}, {32*1152}"); g(f"s_mul_i32 s{sT1}, s{sCG}, 144"); g(f"s_add_u32 s{sC2}, s{sC2}, s{sT1}")
        g(f"s_mul_i32 s{sC3}, s{sW}, {WOP}")
        toks = []
        for i in range(23):
            g.begin(); g(f"s_add_u32 s{sT0}, s{sC2}, {i*7*1152}"); g(f"s_add_u32 m0, s{sC3}, {i*1008}")
            toks.append(g(f"buffer_load_dwordx4 {v(t[4] if i == 22 else t[3])}, {SWO}, s{sT0} offen lds")); g.end()
        g(f"v_lshrrev_b32 {v(t[5])}, 2, {v(vN)}"); g(f"v_lshl_add_u32 {v(t[5])}, {v(vG)}, 3, {v(t[5])}"); g(f"v_mul_u32_u24 {v(t[5])}, 144, {v(t[5])}")
        g(f"v_and_b32 {v(t[6])}, 3, {v(vN)}"); g(f"v_lshl_add_u32 {v(t[5])}, {v(t[6])}, 3, {v(t[5])}")
        g(f"s_mul_i32 s{sT0}, s{sODD}, 4608"); g(f"s_add_u32 s{sT0}, s{sT0}, s{sC3}"); g(f"v_add_u32 {v(t[6])}, s{sT0}, {v(t[5])}")
        g(f"s_xor_b32 s{sT0}, s{sODD}, 1"); g(f"s_mul_i32 s{sT0}, s{sT0}, {4*4608}"); g(f"s_add_u32 s{sT0}, s{sT0}, s{sC3}"); g(f"v_add_u32 {v(t[5])}, s{sT0}, {v(t[5])}")
        g.wait(toks)
        for p in range(5):
            for m in range(5):
                for hf in range(2):
                    g(f"ds_read_b64_tr_b16 {WF(p,m,hf)}, {v(t[6] if p < 4 else t[5])} offset:{(p*4608 if p < 4 else 0) + hf*576 + m*32}")
        self.stamp(g, "wostage")
        g.c("skip term")
        fa = V.get(5); fo = V.get(5); sk = V.get(20, 4); xs = V.get(10, 2); ds_ = V.get(10, 2); gg = V.get(6, 2)
        g(f"s_lshl_b32 s{sT0}, s{sC}, 1"); g(f"s_add_u32 s{sT0}, s{sT0}, s{sTH}"); g(f"s_lshl_b32 s{sT0}, s{sT0}, 6")
        g(f"s_mul_i32 s{sC2}, s{sT0}, 1152"); g(f"s_mul_i32 s{sT1}, s{sCG}, 144"); g(f"s_add_u32 s{sC2}, s{sC2}, s{sT1}")
        sOB = S.get(); g(f"s_lshl_b32 s{sOB}, s{sC2}, 1")
        g(f"s_lshl_b32 s{sC3}, s{sTH}, 8"); g(f"s_add_u32 s{sC3}, s{sC3}, {GT}")
        for rd in range(5):
            g(f"v_add_u32 {v(t[2])}, {256*rd}, v0"); g(f"v_mul_u32_u24 {v(t[3])}, 3641, {v(t[2])}"); g(f"v_lshrrev_b32 {v(t[3])}, 16, {v(t[3])}")
            if rd == 4: g(f"v_min_u32 {v(t[3])}, 63, {v(t[3])}")
            g(f"v_mul_u32_u24 {v(t[4])}, 18, {v(t[3])}"); g(f"v_sub_u32 {v(t[4])}, {v(t[2])}, {v(t[4])}")
            if rd == 4: g(f"v_min_u32 {v(t[4])}, 17, {v(t[4])}")
            g(f"v_mul_u32_u24 {v(fa+rd)}, {PARTP}, {v(t[3])}"); g(f"v_lshl_add_u32 {v(fa+rd)}, {v(t[4])}, 4, {v(fa+rd)}")
            g(f"v_and_b32 {v(t[5])}, 35, {v(t[3])}"); g(f"v_and_b32 {v(t[6])}, 12, {v(t[3])}"); g(f"v_lshl_add_u32 {v(t[5])}, {v(t[6])}, 1, {v(t[5])}")
            g(f"v_lshrrev_b32 {v(t[6])}, 2, {v(t[3])}"); g(f"v_and_b32 {v(t[6])}, 4, {v(t[6])}"); g(f"v_add_u32 {v(t[5])}, {v(t[5])}, {v(t[6])}")
            g(f"v_mul_u32_u24 {v(t[6])}, 1152, {v(t[5])}"); g(f"v_lshl_add_u32 {v(t[6])}, {v(t[4])}, 3, {v(t[6])}")
            g(f"buffer_load_dwordx2 {v(xs+2*rd,2)}, {v(t[6])}, {SX}, s{sC2} offen")
            g(f"v_lshlrev_b32 {v(fo+rd)}, 1, {v(t[6])}")
            g(f"v_lshl_add_u32 {v(t[7])}, {v(t[4])}, 3, s{sT1}")
            g(f"global_load_dwordx2 {v(ds_+2*rd,2)}, {v(t[7])}, s[64:65]")
            g(f"v_lshl_add_u32 {v(t[5])}, {v(t[5])}, 2, s{sC3}"); g(f"ds_read_b32 {v(gg+rd)}, {v(t[5])}")
        g(f"v_cmp_gt_u32 vcc, 128, v0"); g(f"v_mov_b32 {v(t[2])}, {OOB}"); g(f"v_cndmask_b32 {v(fo+4)}, {v(t[2])}, {v(fo+4)}, vcc")
        tq = V.get(4, 2)
        for rd in range(5):
            for k in range(2):
                g(f"v_lshlrev_b32 {v(sk+4*rd+2*k)}, 16, {v(xs+2*rd+k)}"); g(f"v_and_b32 {v(sk+4*rd+2*k+1)}, s{sMSK}, {v(xs+2*rd+k)}")
                g(f"v_lshlrev_b32 {v(tq+2*k)}, 16, {v(ds_+2*rd+k)}"); g(f"v_and_b32 {v(tq+2*k+1)}, s{sMSK}, {v(ds_+2*rd+k)}")
                g(f"v_pk_mul_f32 {v(sk+4*rd+2*k,2)}, {v(sk+4*rd+2*k,2)}, {v(tq+2*k,2)}")
                g(f"v_pk_mul_f32 {v(sk+4*rd+2*k,2)}, {v(sk+4*rd+2*k,2)}, {v(gg+(rd&~1),2)} op_sel:[0,{rd&1}] op_sel_hi:[1,{rd&1}]")
        V.rel(xs, 10); V.rel(ds_, 10); V.rel(gg, 6); V.rel(tq, 4)
        g2 = V.get(4, 2)
        g(f"s_lshl_b32 s{sT0}, s{sODD}, 7"); g(f"s_add_u32 s{sT1}, s{sC3}, s{sT0}"); g(f"v_lshl_add_u32 {v(t[2])}, {v(vTOK)}, 2, s{sT1}")
        g(f"s_xor_b32 s{sT0}, s{sT0}, 128"); g(f"s_add_u32 s{sT1}, s{sC3}, s{sT0}"); g(f"v_lshl_add_u32 {v(t[3])}, {v(vTOK)}, 2, s{sT1}")
        for lt in range(4): g(f"ds_read_b32 {v(g2+lt)}, {v(t[2] if lt < 2 else t[3])} offset:{16*(lt&1)}")
        g(f"s_cmp_ge_u32 s{sW}, 2"); g(f"s_cselect_b32 s{sT0}, 0xc0000000, 0x40000000")
        for lt in range(4): g(f"v_mul_f32 {v(g2+lt)}, s{sT0}, {v(g2+lt)}")
        g.c("h part")
        acc = V.get(80, 4); AC = lambda lt, m: acc + (lt*5+m)*4
        NB = 16; bf = V.get(NB*4, 4)
        poll_issue(g, FH_OFF, sC); poll_check(g, "fh")
        sA = [S.get(), S.get()]
        sP0, sP8 = S.get(), S.get()
        g(f"s_lshl_b32 s{sT0}, s{sC}, 1"); g(f"s_add_u32 s{sT0}, s{sT0}, s{sTH}"); g(f"s_lshl_b32 s{sT0}, s{sT0}, 1")
        g(f"s_add_u32 s{sA[0]}, s{sT0}, s{sODD}"); g(f"s_xor_b32 s{sT1}, s{sODD}, 1"); g(f"s_add_u32 s{sA[1]}, s{sT0}, s{sT1}")
        sAH = [S.get(), S.get()]
        for k in range(2):
            g(f"s_mul_i32 s{sAH[k]}, s{sA[k]}, {2*36864}"); g(f"s_add_u32 s{sAH[k]}, s{sAH[k]}, {AH_OFF}")
        g(f"s_lshr_b32 s{sT0}, s{sW}, 1"); g(f"s_mul_i32 s{sT0}, s{sT0}, 18"); g(f"s_mul_i32 s{sP0}, s{sODD}, 10"); g(f"s_add_u32 s{sP0}, s{sP0}, s{sT0}"); g(f"s_lshl_b32 s{sP0}, s{sP0}, 10")
        g(f"s_add_u32 s{sP8}, s{sT0}, s{sODD}"); g(f"s_add_u32 s{sP8}, s{sP8}, 8"); g(f"s_lshl_b32 s{sP8}, s{sP8}, 10")
        units = [(p, lt) for p in range(9) for lt in range(4)]
        def h_load(g, idx):
            p, lt = units[idx]
            g.begin(); g(f"s_add_u32 s{sT0}, s{sAH[lt>>1]}, s{sP8 if p == 8 else sP0}")
            off = (lt & 1)*36864 + (0 if p == 8 else p*1024)
            if off: g(f"s_add_u32 s{sT0}, s{sT0}, {off}")
            g(f"buffer_load_dwordx4 {v(bf+(idx%NB)*4,4)}, {v(vL16)}, {SWS}, s{sT0} offen sc1"); g.end()
        for idx in range(NB): h_load(g, idx)
        for idx, (p, lt) in enumerate(units):
            for m in range(5):
                c_ = "0" if p == 0 else v(AC(lt,m),4)
                g(f"v_mfma_f32_16x16x32_bf16 {v(AC(lt,m),4)}, {CF(p,m)}, {v(bf+(idx%NB)*4,4)}, {c_}")
            if idx + NB < len(units): h_load(g, idx+NB)
        self.stamp(g, "hpart")
        poll_issue(g, FO_OFF, sC)
        for lt in range(4):
            for k in range(10): g(f"v_pk_mul_f32 {v(AC(lt,0)+2*k,2)}, {v(AC(lt,0)+2*k,2)}, {v(g2+(lt&~1),2)} op_sel:[0,{lt&1}] op_sel_hi:[1,{lt&1}]")
        poll_check(g, "fo")
        for k in range(2):
            g(f"s_mul_i32 s{sAH[k]}, s{sA[k]}, {2*18432}"); g(f"s_add_u32 s{sAH[k]}, s{sAH[k]}, {AO_OFF}")
        g(f"s_add_u32 s{sP0}, s{sST0}, s{sODD}"); g(f"s_lshl_b32 s{sP0}, s{sP0}, 10")
        g(f"s_lshr_b32 s{sP8}, s{sW}, 1"); g(f"s_mul_i32 s{sP8}, s{sP8}, 9"); g(f"s_add_u32 s{sP8}, s{sP8}, 4"); g(f"s_lshl_b32 s{sP8}, s{sP8}, 10")
        ou = [(lt, p) for lt in range(4) for p in range(5 if lt < 2 else 4)]
        ob = A.get(72, 4) if False else None
        def o_load(g, idx):
            lt, p = ou[idx]
            g.begin(); g(f"s_add_u32 s{sT0}, s{sAH[lt>>1]}, s{sP8 if p == 4 else sP0}")
            off = (lt & 1)*18432 + (0 if p == 4 else p*1024)
            if off: g(f"s_add_u32 s{sT0}, s{sT0}, {off}")
            g(f"buffer_load_dwordx4 {v(bf+(idx%NB)*4,4)}, {v(vL16)}, {SWS}, s{sT0} offen sc1"); g.end()
        for idx in range(NB): o_load(g, idx)
        pw = [t[2], t[3]]
        g(f"v_mul_u32_u24 {v(t[4])}, {PARTP}, {v(vN)}"); g(f"v_lshl_add_u32 {v(t[4])}, {v(vG)}, 4, {v(t[4])}")
        g(f"s_lshl_b32 s{sT0}, s{sW}, 1"); g(f"s_add_u32 s{sT1}, s{sT0}, s{sODD}"); g(f"s_mul_i32 s{sT1}, s{sT1}, {32*PARTP}"); g(f"v_add_u32 {v(pw[0])}, s{sT1}, {v(t[4])}")
        g(f"s_xor_b32 s{sT1}, s{sODD}, 1"); g(f"s_add_u32 s{sT1}, s{sT1}, s{sT0}"); g(f"s_mul_i32 s{sT1}, s{sT1}, {32*PARTP}"); g(f"v_add_u32 {v(pw[1])}, s{sT1}, {v(t[4])}")
        g.waitall(lg=True); g("s_barrier")
        pend = None
        for idx, (lt, p) in enumerate(ou):
            for m in range(5):
                g(f"v_mfma_f32_16x16x32_bf16 {v(AC(lt,m),4)}, {WF(p,m)}, {v(bf+(idx%NB)*4,4)}, {v(AC(lt,m),4)}")
            if idx + NB < len(ou): o_load(g, idx+NB)
            if pend is not None and p == 1:
                for m in range(5): g(f"ds_write_b128 {v(pw[pend>>1])}, {v(AC(pend,m),4)} offset:{(pend&1)*16*PARTP + 64*m}")
                pend = None
            if idx + 1 == len(ou) or ou[idx+1][0] != lt: pend = lt
        for m in range(5): g(f"ds_write_b128 {v(pw[pend>>1])}, {v(AC(pend,m),4)} offset:{(pend&1)*16*PARTP + 64*m}")
        self.stamp(g, "opart")
        g.waitall(lg=True); g("s_barrier")
        fin = acc
        for rd in range(5):
            for w in range(4): g(f"ds_read_b128 {v(fin+(rd*4+w)*4,4)}, {v(fa+rd)} offset:{w*64*PARTP}")
        for rd in range(5):
            b = fin + rd*16
            for k in range(2):
                g(f"v_pk_add_f32 {v(b+2*k,2)}, {v(b+2*k,2)}, {v(b+4+2*k,2)}"); g(f"v_pk_add_f32 {v(b+8+2*k,2)}, {v(b+8+2*k,2)}, {v(b+12+2*k,2)}")
                g(f"v_pk_add_f32 {v(b+2*k,2)}, {v(b+2*k,2)}, {v(sk+4*rd+2*k,2)}"); g(f"v_pk_add_f32 {v(b+2*k,2)}, {v(b+2*k,2)}, {v(b+8+2*k,2)}")
            g(f"buffer_store_dwordx4 {v(b,4)}, {v(fo+rd)}, {SOUT}, s{sOB} offen")
        g(f"s_or_b32 s{sT0}, s{sC}, s{sJ}"); g(f"s_or_b32 s{sT0}, s{sT0}, s{sW}"); g(f"s_cmp_eq_u32 s{sT0}, 0"); g(f"s_cselect_b32 s{sT1}, 0, {OOB}"); g(f"v_mov_b32 {v(t[0])}, s{sT1}")
        g("s_mov_b64 exec, 1"); g(f"buffer_store_dword {v(vTAG)}, {v(t[0])}, {SWS}, 0 offen sc1"); g("s_mov_b64 exec, -1")
        if self.stamps:
            self.stamp(g, "end"); g.waitall(vm=True); self.stamp(g, "drained")
            g(f"s_memrealtime s[{self.sT}:{self.sT+1}]"); g.waitall(lg=True); g(f"v_writelane_b32 {v(self.vST)}, s{self.sT}, 63")
            g(f"s_lshl_b32 s{sT0}, s2, 2"); g(f"s_add_u32 s{sT0}, s{sT0}, s{sW}"); g(f"s_lshl_b32 s{sT0}, s{sT0}, 8"); g(f"s_add_u32 s{sT0}, s{sT0}, {ST_OFF}")
            g(f"v_lshlrev_b32 {v(t[0])}, 2, {v(vL)}"); g(f"buffer_store_dword {v(self.vST)}, {v(t[0])}, {SWS}, s{sT0} offen")
        g("L_end:"); g("s_endpgm")
        g.add(self.tail)
        body = finalize(g)
        kn = NAME + "_kernel"
        ref = open("cdna_kernels/" + NAME + ".s.ref").read().split("\n") if False else []
        txt = f"; @launch grid=(256,1,1) block=(256,1,1) lds={LDS_TOTAL}\n.amdgcn_target \"amdgcn-amd-amdhsa--gfx950\"\n.text\n.globl {kn}\n.p2align 8\n.type {kn},@function\n{kn}:\n"
        txt += body + "    s_endpgm\n.fill 8192, 4, 0xbf810000\n"
        txt += f""".section .rodata,"a"
.p2align 6
.amdhsa_kernel {kn}
  .amdhsa_next_free_vgpr 512
  .amdhsa_next_free_sgpr 102
  .amdhsa_accum_offset 256
  .amdhsa_group_segment_fixed_size 0
  .amdhsa_kernarg_size 136
  .amdhsa_user_sgpr_count 2
  .amdhsa_user_sgpr_kernarg_segment_ptr 1
  .amdhsa_system_sgpr_workgroup_id_x 1
  .amdhsa_float_denorm_mode_32 3
.end_amdhsa_kernel
"""
        return txt

if __name__ == "__main__":
    k = K(stamps=True); t = k.build(); open("v1_st.s", "w").write(t); open("v1_st.names", "w").write(" ".join(k.stnames))
    print("vgpr hw", k.V.hw, "agpr hw", k.A.hw)
    k = K(); open("v1.s", "w").write(k.build())
```

```python
import sys
from gf import *
NAME = "gated_mix__ssm_conv_s5__linear_kernel_hedgehog__prompt"
FL_OFF=0x1000
AGG_OFF=0x40000; KVP_OFF=0x80000
WP_OFF=0x200000; WPQ=92160; AH_OFF=0x400000; AO_OFF=0x900000; BP_OFF=0xC00000; BPS=54*4608; ST_OFF=0x1000000
WS_SIZE=0x10000000
OOB=0x40000000
R_X=0; R_B=65536; T4=98304; R_W1=110592; LDS_TOTAL=163840
NR=4
PK=R_W1; PKP=224; PQ=R_W1; PQP=176
WB=77824; WQ2=57344
KVA=141312; KVAP=208
R_M=149504
AGS=R_M; ACP=R_M+2304; SCR=R_M+4608; SCRP=1536; GT=R_M+10752; LF=R_M+11264
CNT=LF+2048
PARTP=304; PA_OFF=256*304
LOG2E=0x3fb8aa3b
SPIN=200000
NV=128
DPP = "row_ror:8 row_mask:0xf bank_mask:0xf"
MF = "v_mfma_f32_16x16x32_bf16"
SX, SBRE, SBIM, ST4, SWQ, SWPHI, SWS, SCRE, SCIM, SWO, SOUT = [s_(4*i, 4) for i in range(1, 12)]
def kv_lds(it): return (R_W1 + it*10240) if it < 3 else (16384 + (it-3)*10240) if it < 7 else (WB + (it-7)*10240)
def q_lds(it): return it*4096 if it < 4 else WQ2 + (it-4)*4096
def items(L):
    out = []; pend = []; last = None
    for x in L:
        ins = [I(y.strip()) for y in x.split("\n")]
        em = lambda b: (lambda st: st.b.append(b))
        if any(i.k == "vm" for i in ins):
            last = [i for i in ins if i.k == "vm"][-1]
            out.append(([em(pend)] if pend else []) + [em(ins)]); pend = []
        else: pend = pend + ins
    assert not pend
    return out, last
def emit_items(g, its, n=None):
    k = 0
    while its and (n is None or k < n):
        for e in its.pop(0): e(g)
        k += 1

class Path:
    def __init__(P, K, nm):
        P.K = K; P.nm = nm; P.O = K.opt
        P.V = Alloc("v", 1, NV); P.A = Alloc("a", 0, 256-NV); P.S = Alloc("s", 60, 84); P.S.free |= {3, 100, 101}
        P.tail = Stream(); P.names = []; P.uid = 0
        S = P.S; V = P.V
        P.sC, P.sJ, P.sW, P.sU, P.sT0, P.sT1, P.sT2, P.sR, P.sSP, P.sTAG, P.sLB = [S.get() for _ in range(11)]
        P.sPM = S.get(2); P.sT = S.get(2)
        P.t = [V.get() for _ in range(8)]
        P.vL, P.vL16, P.vN, P.vG, P.vN3, P.vR2, P.vTOK, P.vOOB, P.vTAG, P.vPV, P.vFW, P.vFR, P.vFLAG = [V.get() for _ in range(13)]
        if K.stamps: P.vST = V.get()
    def stamp(P, g, name):
        g.c("#" + name)
        if not P.K.stamps: return
        g.begin(); g(f"s_memrealtime s[{P.sT}:{P.sT+1}]"); g.waitall(lg=True); g(f"v_writelane_b32 {v(P.vST)}, s{P.sT}, {len(P.names)}"); g.end()
        P.names.append(name)
    def lanes(P, g):
        g(f"v_and_b32 {v(P.vN)}, 15, {v(P.vL)}"); g(f"v_lshrrev_b32 {v(P.vG)}, 4, {v(P.vL)}")
        g(f"v_and_b32 {v(P.vN3)}, 3, {v(P.vN)}"); g(f"v_lshrrev_b32 {v(P.vR2)}, 2, {v(P.vN)}"); g(f"v_lshl_add_u32 {v(P.vTOK)}, {v(P.vR2)}, 3, {v(P.vN3)}")
    def sync_setup(P, g, grp):
        t = P.t
        g(f"s_mov_b32 s{P.sLB}, 0x400000")
        g(f"s_lshl_b32 s{P.sT0}, s{P.sW}, 8"); g(f"s_add_u32 s{P.sT0}, s{P.sT0}, {LF + grp*1024}"); g(f"v_lshl_add_u32 {v(P.vFW)}, {v(P.vL)}, 2, s{P.sT0}")
        g(f"v_lshlrev_b32 {v(P.vFR)}, 8, {v(P.vN3)}"); g(f"v_add_u32 {v(P.vFR)}, {LF}, {v(P.vFR)}")
        g(f"v_mov_b32 {v(t[0])}, 0"); g(f"ds_write_b32 {v(P.vFW)}, {v(t[0])}")
        if grp == 0: g(f"ds_write_b32 {v(P.vFR)}, {v(t[0])} offset:2048")
        g(f"s_lshl4_add_u32 s{P.sT0}, s{P.sC}, s{P.sJ}"); g(f"s_lshl_b32 s{P.sT0}, s{P.sT0}, 9"); g(f"s_add_u32 s{P.sT0}, s{P.sT0}, {FL_OFF}")
        g(f"v_and_b32 {v(P.vFLAG)}, 31, {v(P.vL)}"); g(f"v_lshl_add_u32 {v(P.vFLAG)}, {v(P.vFLAG)}, 2, s{P.sT0}")
    def tag(P, g):
        g(f"s_mul_i32 s{P.sTAG}, s{P.sTAG}, 0x9E3779B1"); g(f"s_add_u32 s{P.sTAG}, s{P.sTAG}, 0x7F4A7C15"); g(f"v_mov_b32 {v(P.vTAG)}, s{P.sTAG}")
    def sig(P, g, idn):
        g.begin(); g(f"v_mov_b32 {v(P.t[0])}, {idn}"); g(f"ds_write_b32 {v(P.vFW)}, {v(P.t[0])}"); g.end()
    def lw_issue(P, g, grp): return g(f"ds_read_b32 {v(P.vPV)}, {v(P.vFR)} offset:{grp*1024}")
    def lw_check(P, g, grp, idn, sleep=0):
        P.uid += 1; nm = f"{P.nm}{P.uid}"; pm = f"s[{P.sPM}:{P.sPM+1}]"
        g.begin(); g(f"v_cmp_gt_u32 {pm}, {idn}, {v(P.vPV)}"); g(f"s_cmp_lg_u64 {pm}, 0"); g(f"s_cbranch_scc0 L_lb_{nm}")
        g(f"L_ll_{nm}:\n" + (f"s_sleep {sleep}\n" if sleep else "") + f"ds_read_b32 {v(P.vPV)}, {v(P.vFR)} offset:{grp*1024}\ns_sub_u32 s{P.sLB}, s{P.sLB}, 1\ns_cmp_lt_i32 s{P.sLB}, 0\n"
          f"s_waitcnt lgkmcnt(0)\nv_cmp_gt_u32 {pm}, {idn}, {v(P.vPV)}\ns_cbranch_scc1 L_lb_{nm}\ns_cmp_lg_u64 {pm}, 0\ns_cbranch_scc1 L_ll_{nm}\nL_lb_{nm}:", raw=True); g.end()
    def lwait(P, g, grp, idn, sleep=0): P.lw_issue(g, grp); P.lw_check(g, grp, idn, sleep)
    def poll_issue(P, g, vp, off, d=None): return g(f"buffer_load_dword {v(d or P.vPV)}, {v(vp)}, {SWS}, 0 offen offset:{off} sc1")
    def poll_loop(P, nm, vp, off, sleep):
        pm = f"s[{P.sPM}:{P.sPM+1}]"
        return (f"L_pl_{nm}:\nbuffer_load_dword {v(P.vPV)}, {v(vp)}, {SWS}, 0 offen offset:{off} sc1\ns_sub_u32 s{P.sLB}, s{P.sLB}, 64\ns_cmp_lt_i32 s{P.sLB}, 0\n"
                f"s_waitcnt vmcnt(0)\nv_cmp_ne_u32 {pm}, {v(P.vPV)}, {v(P.vTAG)}\ns_cbranch_scc1 L_pb_{nm}\ns_cmp_lg_u64 {pm}, 0\ns_cbranch_scc0 L_pb_{nm}\ns_sleep {sleep}\ns_branch L_pl_{nm}\nL_pb_{nm}:")
    def poll_check(P, g, vp, off, d=None, sleep=2):
        P.uid += 1; nm = f"{P.nm}{P.uid}"; pm = f"s[{P.sPM}:{P.sPM+1}]"
        g.begin(); g(f"v_cmp_ne_u32 {pm}, {v(d or P.vPV)}, {v(P.vTAG)}"); g(f"s_cmp_lg_u64 {pm}, 0"); g(f"s_cbranch_scc0 L_pb_{nm}")
        g(P.poll_loop(nm, vp, off, sleep), raw=True); g.end()
    def poll1(P, g, vp, off, grp, idn, sleep):
        P.uid += 1; nm = f"{P.nm}{P.uid}"
        g.begin(); g(f"s_cmp_lg_u32 s{P.sW}, 0"); g(f"s_cbranch_scc1 L_pb_{nm}"); g(P.poll_loop(nm, vp, off, sleep), raw=True); g.end()
        P.sig(g, idn); P.lwait(g, grp, idn, sleep=1)
    def flag_w0(P, g, off):
        g.begin(); g(f"s_cmp_eq_u32 s{P.sW}, 0"); g(f"s_cselect_b32 s{P.sSP}, 0, {OOB}"); g(f"v_or_b32 {v(P.vPV)}, s{P.sSP}, {v(P.vFLAG)}")
        g(f"buffer_store_dword {v(P.vTAG)}, {v(P.vPV)}, {SWS}, 0 offen offset:{off} sc1"); g.end()
    def flag_last(P, g, off, cnt):
        t0 = P.t[0]; t1 = P.vPV
        g.begin(); g(f"v_mov_b32 {v(t0)}, {CNT + 256*cnt}"); g(f"v_mov_b32 {v(t1)}, 1"); g("s_mov_b64 exec, 1"); g(f"ds_add_rtn_u32 {v(t1)}, {v(t0)}, {v(t1)}"); g("s_mov_b64 exec, -1")
        g(f"v_readfirstlane_b32 s{P.sSP}, {v(t1)}"); g(f"s_cmp_eq_u32 s{P.sSP}, 3"); g(f"s_cselect_b32 s{P.sSP}, 0, {OOB}"); g(f"v_or_b32 {v(t0)}, s{P.sSP}, {v(P.vFLAG)}")
        g(f"buffer_store_dword {v(P.vTAG)}, {v(t0)}, {SWS}, 0 offen offset:{off} sc1"); g.end()
    def lam_base(P, g, p, aa, th_, dt):
        for x in p: g(f"v_lshlrev_b32 {v(x)}, 16, {v(x)}")
        g(f"v_mul_f32 {v(dt)}, {LOG2E}, {v(p[2])}"); g(f"v_exp_f32 {v(dt)}, {v(dt)}"); g(f"v_cvt_pk_bf16_f32 {v(dt)}, 0, {v(dt)}")
        g(f"v_mul_f32 {v(aa)}, {v(dt)}, {v(p[0])}"); g(f"v_mul_f32 {v(aa)}, {LOG2E}, {v(aa)}")
        g(f"v_mul_f32 {v(th_)}, {v(dt)}, {v(p[1])}"); g(f"v_mul_f32 {v(th_)}, 0.15915494, {v(th_)}")
    def cpow(P, g, dst, mul, aa, th_):
        t = P.t; a_, b_ = aa, th_
        if mul is not None:
            g(f"v_mul_f32 {v(t[5])}, {mul}, {v(aa)}"); g(f"v_mul_f32 {v(t[6])}, {mul}, {v(th_)}"); a_, b_ = t[5], t[6]
        g(f"v_rndne_f32 {v(t[7])}, {v(b_)}"); g(f"v_sub_f32 {v(t[6])}, {v(b_)}, {v(t[7])}")
        g(f"v_exp_f32 {v(t[5])}, {v(a_)}"); g(f"v_cos_f32 {v(dst)}, {v(t[6])}"); g(f"v_sin_f32 {v(dst+1)}, {v(t[6])}")
        g(f"v_mul_f32 {v(dst)}, {v(dst)}, {v(t[5])}"); g(f"v_mul_f32 {v(dst+1)}, {v(dst+1)}, {v(t[5])}")
    def cf_addr(P, g, sCG, vCF, vCF4):
        t = P.t
        g(f"s_mul_i32 s{P.sT0}, s{sCG}, {BPS}"); g(f"s_add_u32 s{P.sT0}, s{P.sT0}, {BP_OFF}")
        g(f"v_and_b32 {v(t[3])}, 7, {v(P.vN)}"); g(f"v_lshlrev_b32 {v(t[3])}, 4, {v(t[3])}"); g(f"v_lshl_add_u32 {v(t[3])}, {v(P.vG)}, 7, {v(t[3])}")
        g(f"v_lshrrev_b32 {v(t[4])}, 3, {v(P.vN)}"); g(f"v_lshl_add_u32 {v(t[3])}, {v(t[4])}, 9, {v(t[3])}"); g(f"v_add_u32 {v(vCF)}, s{P.sT0}, {v(t[3])}")
        g(f"v_lshl_add_u32 {v(vCF4)}, {v(t[4])}, 30, {v(vCF)}"); g(f"v_add_u32 {v(vCF4)}, 4096, {v(vCF4)}")
    def finish(P, g, w8off):
        if P.K.stamps:
            P.stamp(g, "end"); g.waitall(vm=True); P.stamp(g, "drained")
            g(f"s_memrealtime s[{P.sT}:{P.sT+1}]"); g(f"s_memtime s[{P.sPM}:{P.sPM+1}]"); g.waitall(lg=True); g(f"v_writelane_b32 {v(P.vST)}, s{P.sT}, 63"); g(f"v_writelane_b32 {v(P.vST)}, s{P.sPM}, 61")
            g(f"s_lshl_b32 s{P.sT0}, s2, 3"); g(f"s_add_u32 s{P.sT0}, s{P.sT0}, s{P.sW}"); g(f"s_add_u32 s{P.sT0}, s{P.sT0}, {w8off}"); g(f"s_lshl_b32 s{P.sT0}, s{P.sT0}, 8"); g(f"s_add_u32 s{P.sT0}, s{P.sT0}, {ST_OFF}")
            g(f"v_lshlrev_b32 {v(P.t[0])}, 2, {v(P.vL)}"); g(f"buffer_store_dword {v(P.vST)}, {v(P.t[0])}, {SWS}, s{P.sT0} offen")
        g("s_endpgm")
        g.add(P.tail)

def w23(g, b, size): g(f"s_mov_b32 s{b+2}, {size}"); g(f"s_mov_b32 s{b+3}, 0x20000")
def cmad(g, dst, Sx, Lx, Ax):
    g(f"v_fma_f32 {v(dst)}, {v(Sx)}, {v(Lx)}, {v(Ax)}"); g(f"v_fma_f32 {v(dst+1)}, {v(Sx+1)}, {v(Lx)}, {v(Ax+1)}")
    g(f"v_fma_f32 {v(dst)}, -{v(Sx+1)}, {v(Lx+1)}, {v(dst)}"); g(f"v_fmac_f32 {v(dst+1)}, {v(Sx)}, {v(Lx+1)}")
E_W1, E_WA, E_FC, E_XX, E_CP, E_KVA, E_FH, E_CLD, E_SP, E_SR = range(1, 11)
A_W3, A_S6, A_PK, A_KV, A_GT, A_FO = range(1, 7)
KS_ = 6

class K:
    def __init__(self, stamps=False, rot=(1,2), opt=None):
        self.stamps = stamps; self.rot = rot; self.opt = opt or {}
    def common(self, P):
        g = Stream()
        if self.stamps:
            g(f"v_mov_b32 {v(P.vST)}, 0")
            g(f"s_memrealtime s[{P.sT}:{P.sT+1}]"); g(f"s_memtime s[{P.sPM}:{P.sPM+1}]"); g.waitall(lg=True); g(f"v_writelane_b32 {v(P.vST)}, s{P.sT}, 62"); g(f"v_writelane_b32 {v(P.vST)}, s{P.sT}, 0"); g(f"v_writelane_b32 {v(P.vST)}, s{P.sPM}, 60")
            P.names.append("start")
        return g
    def ids(self, g, P):
        g(f"v_and_b32 {v(P.vL)}, 63, v0"); g(f"s_bfe_u32 s{P.sW}, s{P.sW}, 0x20006")
        g(f"s_and_b32 s{P.sT0}, s2, 1"); g(f"s_bfe_u32 s{P.sT1}, s2, 0x30003"); g(f"s_lshl3_add_u32 s{P.sC}, s{P.sT0}, s{P.sT1}")
        g(f"s_lshr_b32 s{P.sR}, s2, 6"); g(f"s_bfe_u32 s{P.sT0}, s2, 0x20001"); g(f"s_lshl2_add_u32 s{P.sJ}, s{P.sT0}, s{P.sR}")
        g(f"s_lshl2_add_u32 s{P.sU}, s{P.sC}, s{P.sW}"); g(f"v_lshlrev_b32 {v(P.vL16)}, 4, {v(P.vL)}"); g(f"v_mov_b32 {v(P.vOOB)}, {OOB}")

    def pathA(self):
        P = Path(self, "a"); self.PA = P; O = self.opt
        V, A, S, t = P.V, P.A, P.S, P.t
        sC, sJ, sW, sU, sT0, sT1, sT2, sR = P.sC, P.sJ, P.sW, P.sU, P.sT0, P.sT1, P.sT2, P.sR
        vL, vL16, vN, vG, vN3, vR2, vTOK, vOOB, vTAG = P.vL, P.vL16, P.vN, P.vG, P.vN3, P.vR2, P.vTOK, P.vOOB, P.vTAG
        G = self.common(P); g = G
        self.ids(g, P)
        S.free |= set(range(6, 20)) | {46, 47, 56, 57, 58, 59}
        xfv = V.get(16); xf = A.get(128)
        XQ = lambda k: ("a", xf + 4*k) if k < 32 else ("v", xfv + 4*(k-32))
        XF = lambda st, T: r(*XQ(st*2+T), 4)
        pv_ = V.grp(4)
        sPS, sPP, sINA, sPSC, sD, sD2 = [S.get() for _ in range(6)]
        g(f"s_mul_i32 s{sPS}, s{sU}, 43"); g(f"s_lshr_b32 s{sPS}, s{sPS}, 7"); g(f"s_mul_i32 s{sT1}, s{sPS}, 3"); g(f"s_sub_u32 s{sPP}, s{sU}, s{sT1}")
        g(f"s_cmp_ge_u32 s{sU}, 54"); g(f"s_cselect_b32 s{sINA}, {OOB}, 0"); g(f"s_cselect_b32 s{sPS}, 0, s{sPS}")
        g(f"v_mul_u32_u24 {v(t[2])}, 52, {v(vL)}"); g(f"v_lshrrev_b32 {v(t[2])}, 8, {v(t[2])}")
        g(f"v_mul_u32_u24 {v(t[3])}, {3456-80}, {v(t[2])}"); g(f"v_add3_u32 {v(pv_[0])}, {v(t[3])}, {v(vL16)}, s{sINA}")
        g(f"s_add_u32 s{sT1}, s{sPP}, 1"); g(f"s_cmp_eq_u32 s{sT1}, 3"); g(f"s_cselect_b32 s{sT1}, 0, s{sT1}"); g(f"s_mul_i32 s{sT1}, s{sT1}, 1152")
        g(f"s_mul_i32 s{sT2}, s{sPS}, {32*3456}"); g(f"s_add_u32 s{sT1}, s{sT1}, s{sT2}"); g(f"s_mul_i32 s{sT2}, s{sJ}, 72"); g(f"s_add_u32 s{sD}, s{sT1}, s{sT2}")
        g(f"s_lshl_b32 s{sPSC}, s{sW}, 13"); g(f"s_add_u32 s{sPSC}, s{sPSC}, {R_W1}")
        w23(g, 20, 576*3456); w23(g, 24, 32*648); g(f"s_mov_b32 m0, s{sPSC}")
        g(f"s_cmp_eq_u32 s{sPP}, 1"); g(f"s_cselect_b32 s{sT2}, {OOB}, s{sINA}"); g(f"v_or_b32 {v(pv_[2])}, s{sT2}, {v(vL16)}"); g(f"s_mul_i32 s{sD2}, s{sJ}, 1296")
        P.lanes(g)
        g(f"s_lshl_b32 s{sT0}, s{sPS}, 6"); g(f"v_lshl_add_u32 {v(pv_[1])}, {v(vG)}, 4, s{sT0}")
        g("s_waitcnt lgkmcnt(0)")
        P.stamp(g, "karg")
        g("s_mov_b64 s[20:21], s[92:93]"); g("s_mov_b64 s[24:25], s[94:95]")
        gch = V.get(4)
        g(f"buffer_load_dwordx4 {v(pv_[0])}, {SWQ}, s{sD} offen lds"); g(f"s_add_u32 s{sD}, s{sD}, {12*3456-960}")
        g(f"buffer_load_dwordx4 {v(pv_[0])}, {SWQ}, s{sD} offen offset:960 lds"); g(f"s_add_u32 s{sD}, s{sD}, {12*3456-960}"); g("s_mov_b32 exec_hi, 0xff")
        g(f"buffer_load_dwordx4 {v(pv_[0])}, {SWQ}, s{sD} offen offset:1920 lds"); g("s_mov_b32 exec_hi, -1"); g(f"s_add_u32 m0, s{sPSC}, 3072")
        g(f"s_load_dword s{P.sTAG}, s[28:29], 0")
        g(f"buffer_load_dwordx4 {v(pv_[2])}, {SWPHI}, s{sD2} offen lds"); g("s_mov_b64 exec, 0x1ffff")
        pl = g(f"buffer_load_dwordx4 {v(pv_[2])}, {SWPHI}, s{sD2} offen offset:1024 lds"); g("s_mov_b32 exec_lo, 0x44004400"); g("s_mov_b32 exec_hi, 0x44004400")
        g(f"global_load_dwordx4 {v(gch,4)}, {v(pv_[1])}, s[98:99]"); g("s_mov_b64 exec, -1")
        g("s_mov_b64 s[32:33], s[88:89]"); g("s_mov_b64 s[36:37], s[90:91]"); g("s_mov_b64 s[40:41], s[96:97]")
        S.free |= set(range(84, 100))
        w23(g, 28, WS_SIZE)
        pA0 = [V.get(4) for _ in range(2)]; pA1 = [V.get(4) for _ in range(2)]
        pB0 = [V.get(4) for _ in range(3)]; pB1 = [V.get(4) for _ in range(3)]
        pD = V.get(24)
        aA, aA0, aB0, aB1 = pv_; aC0, aC1, st0, st2 = V.grp(4); idA, idV = t[0], t[1]
        vT2, vFX0, vFX1 = V.get(), V.get(), V.get()
        e_ = t[2]
        g(f"v_lshrrev_b32 {v(t[6])}, 3, {v(vN)}"); g(f"v_lshl_add_u32 {v(e_)}, {v(t[6])}, 2, {v(vN3)}")
        g(f"s_add_u32 s{sT0}, s{sPSC}, 3072"); g(f"s_cmp_eq_u32 s{sPP}, 2"); g(f"s_cselect_b32 s{sT1}, 8, 0"); g(f"s_cselect_b32 s{sT2}, 0, 32")
        g(f"s_add_u32 s{sT1}, s{sT1}, s{sT0}"); g(f"v_lshl_add_u32 {v(aB1)}, {v(e_)}, 1, s{sT1}")
        g(f"s_lshl_b32 s{sT1}, s{sPP}, 2"); g(f"s_sub_u32 s{sT2}, s{sT2}, s{sT1}"); g(f"s_add_u32 s{sT2}, s{sT2}, s{sT0}"); g(f"v_lshl_add_u32 {v(aC1)}, {v(e_)}, 1, s{sT2}")
        g(f"v_mul_u32_u24 {v(t[3])}, 288, {v(vG)}"); g(f"v_add_u32 {v(aB0)}, {v(t[3])}, {v(aB1)}"); g(f"v_add_u32 {v(aC0)}, {v(t[3])}, {v(aC1)}")
        g(f"v_mul_u32_u24 {v(aA)}, 80, {v(vTOK)}"); g(f"v_add_u32 {v(aA)}, s{sPSC}, {v(aA)}"); g(f"v_lshl_add_u32 {v(aA0)}, {v(vG)}, 4, {v(aA)}")
        mA, mB, mC, mG = S.get(2), S.get(2), S.get(2), S.get(2)
        g(f"s_mov_b32 s{mC}, 0xf0f0f0f0"); g(f"s_mov_b32 s{mC+1}, 0xf0f0f0f0")
        g(f"s_mov_b32 s{mA}, 0x0f0f0f0f"); g(f"s_mov_b32 s{mA+1}, 0xf0f00f0f"); g(f"s_mov_b32 s{mB}, 0x0f0f0f0f"); g(f"s_mov_b32 s{mB+1}, 0xf0f0f0f0")
        for m in range(2):
            g(f"v_mov_b64 {v(pA1[m],2)}, 0"); g(f"v_mov_b64 {v(pA1[m]+2,2)}, 0")
        for nu in range(3): g(f"v_mov_b64 {v(pB1[nu]+2,2)}, 0")
        g(f"v_cmp_le_u32 s[{mG}:{mG+1}], 18, {v(vL)}"); g(f"v_mul_u32_u24 {v(idA)}, 38, {v(vL)}"); g(f"v_subrev_u32 {v(idV)}, 36, {v(idA)}"); g(f"v_cndmask_b32 {v(idA)}, {v(idA)}, {v(idV)}, s[{mG}:{mG+1}]")
        g(f"v_add_u32 {v(idA)}, s{sT0}, {v(idA)}"); g(f"v_mov_b32 {v(idV)}, 0x3f80")
        sWP = S.get(); sP0, sP2 = S.get(), S.get()
        g(f"s_lshl_b32 s{sWP}, s{sJ}, 17"); g(f"s_add_u32 s{sWP}, s{sWP}, {WP_OFF}")
        g(f"s_mul_i32 s{sP2}, s{sPS}, 5"); g(f"s_mul_i32 s{sT0}, s{sPP}, 3"); g(f"s_add_u32 s{sP0}, s{sP2}, s{sT0}"); g(f"s_lshl1_add_u32 s{sT0}, s{sPS}, 90")
        g(f"s_cmp_eq_u32 s{sPP}, 2"); g(f"s_cselect_b32 s{sP0}, s{sT0}, s{sP0}"); g(f"s_lshl_b32 s{sP0}, s{sP0}, 10"); g(f"s_lshl_b32 s{sP2}, s{sP2}, 10")
        g(f"s_add_u32 s{sT0}, s{sWP}, s{sINA}"); g(f"v_add_u32 {v(st0)}, s{sT0}, {v(vL16)}")
        g(f"v_lshrrev_b32 {v(t[3])}, 1, {v(e_)}"); g(f"v_min_u32 {v(t[3])}, 2, {v(t[3])}"); g(f"v_cmp_gt_u32 s[{mG}:{mG+1}], 8, {v(vN)}")
        g(f"v_and_b32 {v(t[7])}, 1, {v(vN)}"); g(f"v_lshl_add_u32 {v(t[7])}, {v(vR2)}, 1, {v(t[7])}"); g(f"v_lshl_add_u32 {v(t[7])}, {v(vG)}, 2, {v(t[7])}")
        g(f"v_and_b32 {v(vT2)}, 7, {v(vN)}"); g(f"v_lshl_add_u32 {v(vT2)}, {v(vG)}, 3, {v(vT2)}"); g(f"v_cndmask_b32 {v(vT2)}, {v(vT2)}, {v(t[7])}, s[{mG}:{mG+1}]")
        g(f"v_cmp_eq_u32 s[{mG}:{mG+1}], s{sPP}, {v(t[3])}"); g(f"v_lshlrev_b32 {v(vT2)}, 4, {v(vT2)}"); g(f"v_lshl_add_u32 {v(vT2)}, {v(t[3])}, 8, {v(vT2)}")
        g(f"v_add_u32 {v(st2)}, s{sT0}, {v(vT2)}"); g(f"v_cndmask_b32 {v(st2)}, {v(vOOB)}, {v(st2)}, s[{mG}:{mG+1}]")
        g(f"v_lshrrev_b32 {v(t[3])}, 1, {v(vN)}"); g(f"v_xor_b32 {v(t[3])}, {v(t[3])}, {v(vG)}"); g(f"v_lshlrev_b32 {v(t[3])}, 4, {v(t[3])}"); g(f"v_lshl_add_u32 {v(t[3])}, {v(vN)}, 7, {v(t[3])}")
        g(f"s_lshl_b32 s{sT0}, s{sW}, 12"); g(f"v_add_u32 {v(vFX0)}, s{sT0}, {v(t[3])}"); g(f"v_xor_b32 {v(vFX1)}, 64, {v(vFX0)}")
        g(f"s_cmp_eq_u32 s{sPP}, 2"); g(f"s_cselect_b32 s{mG}, 0x44004400, 0"); g(f"s_mov_b32 s{mG+1}, s{mG}")
        P.stamp(g, "sh0")
        W = Stream(); g = W
        g.wait(pl)
        g.begin(); g(f"s_cmp_eq_u32 s{sPP}, 1"); g("s_cselect_b32 exec_lo, -1, 0"); g("s_cselect_b32 exec_hi, 15, 0")
        g(f"ds_write_b16 {v(idA)}, {v(idV)}"); g("s_mov_b64 exec, 0xffff")
        for m in range(2): g(f"ds_read_b64 {v(pA1[m], 2)}, {v(aA)} offset:{320*m+64}")
        g("s_mov_b64 exec, -1"); g.end()
        for m in range(2): g(f"ds_read_b128 {v(pA0[m], 4)}, {v(aA0)} offset:{320*m}")
        hiR = [pD, pD+6, pD+12]
        for nu in range(3):
            lo = [pB0[nu]+k for k in range(4)] + [pB1[nu], pB1[nu]+1]
            for k in range(6):
                ad, base = ((aB0 if nu < 2 else aC0), 72*k) if k < 4 else ((aB1 if nu < 2 else aC1), 36*32 + 72*(k-4))
                if nu < 2: base += 16*nu
                g(f"ds_read_u16 {v(lo[k])}, {v(ad)} offset:{base}"); g(f"ds_read_u16 {v(hiR[nu]+k)}, {v(ad)} offset:{base + 36}")
        AO_ = O.get("aoff", 0)
        if AO_: g.c("@0")
        for nu in range(3):
            lo = [pB0[nu]+k for k in range(4)] + [pB1[nu], pB1[nu]+1]
            for k in (5, 4, 3, 2, 1, 0): g(f"v_lshl_or_b32 {v(lo[k])}, {v(hiR[nu]+k)}, 16, {v(lo[k])}")
            for k in range(6):
                mk = mA if k == 0 else (mB if k < 4 else mC)
                g(f"v_cndmask_b32 {v(lo[k])}, 0, {v(lo[k])}, s[{mk}:{mk+1}]")
        for nu in range(3):
            for m in range(2): g(f"{MF} {v(pD+(nu*2+m)*4,4)}, {v(pA0[m],4)}, {v(pB0[nu],4)}, 0")
        for nu in range(3):
            for m in range(2): g(f"{MF} {v(pD+(nu*2+m)*4,4)}, {v(pA1[m],4)}, {v(pB1[nu],4)}, {v(pD+(nu*2+m)*4,4)}")
        pst = []
        for nu in range(3):
            o = pB0[nu]
            for m in range(2):
                d = pD + (nu*2+m)*4
                g(f"v_cvt_pk_bf16_f32 {v(o+2*m)}, {v(d)}, {v(d+1)}"); g(f"v_cvt_pk_bf16_f32 {v(o+2*m+1)}, {v(d+2)}, {v(d+3)}")
            if nu == 1:
                for k in range(4): g(f"v_cndmask_b32 {v(o+k)}, {v(o+k)}, {v(gch+k)}, s[{mG}:{mG+1}]")
            if nu < 2: pst.append(g(f"buffer_store_dwordx4 {v(o,4)}, {v(st0)}, {SWS}, s{sP0} offen offset:{1024*nu} sc1"))
            else: pst.append(g(f"buffer_store_dwordx4 {v(o,4)}, {v(st2)}, {SWS}, s{sP2} offen offset:2048 sc1"))
        P.stamp(g, "prep")
        for x in pA0 + pA1 + pB0 + pB1 + [gch]: V.rel(x, 4)
        V.rel(pD)
        for x in (aA, aA0, aB0, aB1, aC0, aC1, st0, st2): V.rel(x)
        for x in (mA, mB, mC, mG): S.rel(x, 2)
        for x in (sPS, sPP, sINA, sP0, sP2, sD2): S.rel(x)
        g.c("@%d" % AO_)
        sTH, sCG, sU2 = S.get(), S.get(), S.get()
        g(f"s_bfe_u32 s{sTH}, s2, 0x10001"); g(f"s_bfe_u32 s{sT0}, s2, 0x10002"); g(f"s_lshl2_add_u32 s{sCG}, s{sT0}, s{sR}")
        g(f"s_lshl1_add_u32 s{sU2}, s{sC}, s{sTH}"); g(f"s_lshl2_add_u32 s{sU2}, s{sU2}, s{sW}")
        pc = V.grp(4)
        sRO, sCS, sIN2, sWS_, sWM_, sIN3 = [S.get() for _ in range(6)]
        g(f"s_mul_i32 s{sRO}, s{sU2}, 57"); g(f"s_lshr_b32 s{sRO}, s{sRO}, 9"); g(f"s_mul_i32 s{sT0}, s{sRO}, 9"); g(f"s_sub_u32 s{sCS}, s{sU2}, s{sT0}")
        g(f"s_cmp_ge_u32 s{sU2}, 81"); g(f"s_cselect_b32 s{sIN2}, {OOB}, 0"); g(f"s_cselect_b32 s{sCS}, 0, s{sCS}"); g(f"s_cselect_b32 s{sRO}, 0, s{sRO}")
        g(f"s_lshl_b32 s{sT0}, s{sCS}, 7"); g(f"v_lshl_add_u32 {v(t[2])}, {v(vL)}, 1, s{sT0}")
        for k, p in enumerate((48, 50, 52)): g(f"global_load_ushort {v(pc[k])}, {v(t[2])}, s[{p}:{p+1}]")
        w23(g, 32, 576*1152); w23(g, 36, 576*1152); w23(g, 40, 576*1152)
        P.tag(g); P.sync_setup(g, 0)
        g.c("@%d" % (AO_+1))
        g(f"s_lshl_b32 s{sT0}, s{sCS}, 7")
        g(f"s_mul_i32 s{sT1}, s{sCG}, 9"); g(f"s_add_u32 s{sT1}, s{sT1}, s{sRO}"); g(f"s_mul_i32 s{sT1}, s{sT1}, {8*1152}"); g(f"s_add_u32 s{sT1}, s{sT1}, s{sT0}")
        g(f"v_lshrrev_b32 {v(t[3])}, 3, {v(vL)}"); g(f"v_xor_b32 {v(t[4])}, {v(vL16)}, {v(vL)}"); g(f"v_and_b32 {v(t[4])}, 0x70, {v(t[4])}")
        g(f"v_mul_u32_u24 {v(t[5])}, 1152, {v(t[3])}"); g(f"s_add_u32 m0, s{sPSC}, 5120"); g(f"v_add3_u32 {v(t[4])}, {v(t[4])}, {v(t[5])}, s{sIN2}")
        g(f"buffer_load_dwordx4 {v(t[4])}, {SCRE}, s{sT1} offen lds"); g(f"s_add_u32 m0, s{sPSC}, 6144"); g(f"s_sub_u32 s{sT0}, 127, s{sU2}")
        g(f"buffer_load_dwordx4 {v(t[4])}, {SCIM}, s{sT1} offen lds")
        g(f"s_mul_i32 s{sWS_}, s{sT0}, 205"); g(f"s_lshr_b32 s{sWS_}, s{sWS_}, 10"); g(f"s_mul_i32 s{sT1}, s{sWS_}, 5"); g(f"s_sub_u32 s{sWM_}, s{sT0}, s{sT1}")
        g(f"s_cmp_ge_u32 s{sT0}, 90"); g(f"s_cselect_b32 s{sIN3}, {OOB}, 0"); g(f"s_cselect_b32 s{sWS_}, 0, s{sWS_}")
        g(f"v_lshrrev_b32 {v(t[4])}, 1, {v(vL)}"); g(f"v_mul_u32_u24 {v(t[4])}, {1152-32}, {v(t[4])}"); g(f"v_add3_u32 {v(t[4])}, {v(t[4])}, {v(vL16)}, s{sIN3}")
        g(f"s_mul_i32 s{sT1}, s{sWS_}, {288*1152}"); g(f"s_sub_u32 s{sT1}, s{sT1}, {(16*288-32)*1152}"); g(f"s_mul_i32 s{sT2}, s{sWS_}, {36*1152}")
        g(f"s_cmp_ge_u32 s{sWS_}, 16"); g(f"s_cselect_b32 s{sT1}, s{sT1}, s{sT2}"); g(f"s_cselect_b32 s{sT2}, {32*1152}, 0")
        g(f"v_mad_u32_u24 {v(t[4])}, {v(t[3])}, s{sT2}, {v(t[4])}")
        g(f"s_mul_i32 s{sT2}, s{sCG}, 144"); g(f"s_add_u32 s{sT1}, s{sT1}, s{sT2}"); g(f"s_lshl_b32 s{sT2}, s{sWM_}, 5"); g(f"s_add_u32 m0, s{sPSC}, 7168"); g(f"s_add_u32 s{sT1}, s{sT1}, s{sT2}")
        cl_ = g(f"buffer_load_dwordx4 {v(t[4])}, {SWO}, s{sT1} offen lds")
        sODD = S.get(); sMSK = S.get(); g(f"s_mov_b32 s{sMSK}, 0xffff0000")
        vW1, vW2, vPKW, vPVW = V.grp(4); vCF, vCF4 = V.get(), V.get()
        g(f"v_add_u32 {v(vW1)}, {WB}, {v(vL16)}"); g(f"v_add_u32 {v(vW2)}, {WB}, {v(vT2)}")
        sSL = [S.get() for _ in range(9)]; sWM, sWMq, sD3, sWG, sWGq = [S.get() for _ in range(5)]
        g(f"s_lshr_b32 s{sT0}, s{sJ}, 2"); g(f"s_mul_i32 s{sT0}, s{sT0}, {self.rot[1]}"); g(f"s_mul_i32 s{sT2}, s{sC}, {self.rot[0]}"); g(f"s_add_u32 s{sT0}, s{sT0}, s{sT2}")
        g(f"s_mul_i32 s{sT2}, s{sT0}, 57"); g(f"s_lshr_b32 s{sT2}, s{sT2}, 9"); g(f"s_mul_i32 s{sT2}, s{sT2}, 9"); g(f"s_sub_u32 s{sSL[0]}, s{sT0}, s{sT2}")
        for it in range(1, 9): g(f"s_add_u32 s{sSL[it]}, s{sSL[it-1]}, 1"); g(f"s_cmp_eq_u32 s{sSL[it]}, 9"); g(f"s_cselect_b32 s{sSL[it]}, 0, s{sSL[it]}")
        g(f"s_mul_i32 s{sWM}, s{sW}, 2560"); g(f"s_add_u32 s{sWG}, s{sWM}, s{sWP}"); g(f"s_lshl_b32 s{sWMq}, s{sW}, 10"); g(f"s_add_u32 s{sWGq}, s{sWMq}, s{sWP}"); g(f"s_add_u32 s{sWGq}, s{sWGq}, {WPQ}")
        g(f"v_and_b32 {v(t[2])}, 1, {v(vG)}")
        g(f"s_lshl_b32 s{sT0}, s{sW}, 5"); g(f"v_add_u32 {v(t[3])}, s{sT0}, {v(vN)}"); g(f"v_lshrrev_b32 {v(t[4])}, 1, {v(vG)}"); g(f"v_lshl_add_u32 {v(t[5])}, {v(t[4])}, 4, {v(t[3])}")
        g(f"v_mul_u32_u24 {v(t[6])}, 112, {v(t[2])}"); g(f"v_add_u32 {v(t[6])}, {PK}, {v(t[6])}")
        g(f"v_mul_u32_u24 {v(vPKW)}, {PKP}, {v(t[5])}"); g(f"v_add_u32 {v(vPKW)}, {v(vPKW)}, {v(t[6])}")
        g(f"v_mul_u32_u24 {v(vPVW)}, {PKP}, {v(t[3])}"); g(f"v_lshl_add_u32 {v(t[6])}, {v(t[4])}, 3, {v(t[6])}"); g(f"v_add_u32 {v(vPVW)}, {v(vPVW)}, {v(t[6])}")
        g(f"s_and_b32 s{sODD}, s{sW}, 1")
        sH1 = S.get(); g(f"s_movk_i32 s{sH1}, 18432")
        sL2E = S.get(2); g(f"s_mov_b32 s{sL2E}, {LOG2E}"); g(f"s_mov_b32 s{sL2E+1}, {LOG2E}")
        sW0, sW4, sW5, sCST, sPB = [S.get() for _ in range(5)]
        g(f"s_lshr_b32 s{sW4}, s{sW}, 1"); g(f"s_lshl_b32 s{sW0}, s{sW}, 12")
        g(f"s_mul_i32 s{sCST}, s{sW}, {4*4608}"); g(f"s_add_u32 s{sCST}, s{sCST}, {36*4608}"); g(f"s_mul_i32 s{sD}, s{sW4}, 4608"); g(f"s_add_u32 s{sD}, s{sD}, {52*4608}")
        g(f"s_lshl_b32 s{sW4}, s{sW4}, 10"); g(f"s_add_u32 s{sW4}, s{sW4}, 16384"); g(f"s_add_u32 s{sW5}, s{sW4}, 18432")
        g(f"s_lshl1_add_u32 s{sPB}, s{sC}, s{sTH}"); g(f"s_lshl1_add_u32 s{sPB}, s{sPB}, s{sODD}")
        g.c("@%d" % O.get("cb", 2))
        cr_ = V.get(4); ci_ = V.get(4); wt = V.get(4)
        g(f"v_lshrrev_b32 {v(t[3])}, 3, {v(vL)}")
        g(f"v_and_b32 {v(t[4])}, 7, {v(vL)}"); g(f"v_lshrrev_b32 {v(t[5])}, 1, {v(t[4])}"); g(f"v_xor_b32 {v(t[5])}, {v(t[5])}, {v(t[3])}"); g(f"v_lshlrev_b32 {v(t[5])}, 4, {v(t[5])}")
        g(f"v_lshl_add_u32 {v(t[5])}, {v(t[4])}, 7, {v(t[5])}"); g(f"v_add_u32 {v(t[5])}, s{sPSC}, {v(t[5])}")
        g(f"v_lshl_add_u32 {v(t[6])}, {v(vG)}, 3, {v(vR2)}"); g(f"v_lshlrev_b32 {v(t[6])}, 5, {v(t[6])}"); g(f"v_lshl_add_u32 {v(t[6])}, {v(vN3)}, 3, {v(t[6])}"); g(f"v_add_u32 {v(t[6])}, s{sPSC}, {v(t[6])}")
        g.wait(cl_)
        g(f"ds_read_b128 {v(cr_,4)}, {v(t[5])} offset:5120"); g(f"ds_read_b128 {v(ci_,4)}, {v(t[5])} offset:6144")
        for hf in range(2): crd = g(f"ds_read_b64_tr_b16 {v(wt+2*hf,2)}, {v(t[6])} offset:{7168 + 128*hf}")
        ct = V.get(4); cc = V.get(16); co_ = V.get(8)
        g(f"s_lshl_b32 s{sPSC}, s{sW}, 9"); g(f"s_add_u32 s{sPSC}, s{sPSC}, {KVA+4096}")
        P.lam_base(g, pc[:3], t[3], t[4], t[2]); P.cpow(g, ct, None, t[3], t[4])
        g(f"v_add_f32 {v(t[5])}, -1.0, {v(ct)}")
        g(f"v_mul_f32 {v(t[6])}, {v(pc[0])}, {v(pc[0])}"); g(f"v_fmac_f32 {v(t[6])}, {v(pc[1])}, {v(pc[1])}"); g(f"v_rcp_f32 {v(t[6])}, {v(t[6])}")
        g(f"v_mul_f32 {v(ct+2)}, {v(t[5])}, {v(pc[0])}"); g(f"v_fmac_f32 {v(ct+2)}, {v(ct+1)}, {v(pc[1])}")
        g(f"v_mul_f32 {v(ct+3)}, {v(ct+1)}, {v(pc[0])}"); g(f"v_fma_f32 {v(ct+3)}, -{v(t[5])}, {v(pc[1])}, {v(ct+3)}")
        g(f"v_mul_f32 {v(ct+2)}, {v(ct+2)}, {v(t[6])}"); g(f"v_mul_f32 {v(ct+3)}, {v(ct+3)}, {v(t[6])}")
        g(f"v_lshl_add_u32 {v(t[2])}, {v(vL)}, 3, s{sPSC}"); g(f"ds_write_b64 {v(t[2])}, {v(ct+2,2)}")
        g(f"v_lshrrev_b32 {v(t[3])}, 3, {v(vL)}"); g(f"v_lshl_add_u32 {v(t[2])}, {v(t[3])}, 6, s{sPSC}")
        for k in range(4): g(f"ds_read_b128 {v(cc+4*k,4)}, {v(t[2])} offset:{16*k}")
        g(f"v_and_b32 {v(t[4])}, 7, {v(vL)}")
        g(f"s_mul_i32 s{sT0}, s{sCG}, {BPS}"); g(f"s_add_u32 s{sT0}, s{sT0}, {BP_OFF}")
        g(f"s_lshl_b32 s{sT1}, s{sRO}, 9"); g(f"s_add_u32 s{sT0}, s{sT1}, s{sT0}"); g(f"s_add_u32 s{sT0}, s{sT0}, s{sIN2}"); g(f"s_lshl_b32 s{sT1}, s{sCS}, 3")
        ca, cb = t[2], t[1]; mX = S.get(2); mY = S.get(2)
        g(f"v_lshl_add_u32 {v(t[4])}, {v(t[4])}, 4, s{sT0}")
        g(f"v_add_u32 {v(t[3])}, s{sT1}, {v(t[3])}"); g(f"v_mul_u32_u24 {v(t[5])}, 57, {v(t[3])}"); g(f"v_lshrrev_b32 {v(t[5])}, 9, {v(t[5])}"); g(f"v_mul_u32_u24 {v(t[5])}, 9, {v(t[5])}")
        g(f"v_add_u32 {v(ca)}, {v(t[3])}, {v(t[5])}"); g(f"v_sub_u32 {v(t[3])}, {v(t[3])}, {v(t[5])}")
        g(f"v_cmp_le_u32 s[{mY}:{mY+1}], 4, {v(t[3])}"); g(f"v_cmp_eq_u32 s[{mX}:{mX+1}], 4, {v(t[3])}"); g(f"v_add_u32 {v(cb)}, 4, {v(ca)}"); g(f"v_cndmask_b32 {v(ca)}, {v(ca)}, {v(cb)}, s[{mY}:{mY+1}]")
        g(f"v_cndmask_b32 {v(cb)}, 4, 9, s[{mX}:{mX+1}]"); g(f"v_add_u32 {v(cb)}, {v(cb)}, {v(ca)}")
        for x in (ca, cb):
            g(f"v_lshrrev_b32 {v(t[5])}, 2, {v(x)}"); g(f"v_lshl_add_u32 {v(x)}, {v(x)}, 7, {v(t[4])}"); g(f"v_lshl_add_u32 {v(x)}, {v(t[5])}, 12, {v(x)}")
        for k in range(4):
            for h in range(2):
                cf_ = cc + 4*k + 2*h
                if h == 0: g(f"v_lshlrev_b32 {v(t[3])}, 16, {v(cr_+k)}"); g(f"v_lshlrev_b32 {v(t[4])}, 16, {v(ci_+k)}")
                else: g(f"v_and_b32 {v(t[3])}, s{sMSK}, {v(cr_+k)}"); g(f"v_and_b32 {v(t[4])}, s{sMSK}, {v(ci_+k)}")
                g(f"v_mul_f32 {v(ct+h)}, {v(t[3])}, {v(cf_)}"); g(f"v_mul_f32 {v(ct+2+h)}, {v(t[3])}, {v(cf_+1)}")
                g(f"v_fma_f32 {v(ct+h)}, -{v(t[4])}, {v(cf_+1)}, {v(ct+h)}"); g(f"v_fmac_f32 {v(ct+2+h)}, {v(t[4])}, {v(cf_)}")
            g(f"v_cvt_pk_bf16_f32 {v(co_+k)}, {v(ct)}, {v(ct+1)}"); g(f"v_cvt_pk_bf16_f32 {v(co_+4+k)}, -{v(ct+2)}, -{v(ct+3)}")
        for k in range(2):
            g(f"v_mov_b32 {v(t[3])}, {v(co_+2+k)}"); g(f"v_cndmask_b32 {v(co_+2+k)}, {v(co_+2+k)}, {v(co_+4+k)}, s[{mX}:{mX+1}]"); g(f"v_cndmask_b32 {v(co_+4+k)}, {v(co_+4+k)}, {v(t[3])}, s[{mX}:{mX+1}]")
        cst = [g(f"buffer_store_dwordx4 {v(co_,4)}, {v(ca)}, {SWS}, 0 offen sc1"), g(f"buffer_store_dwordx4 {v(co_+4,4)}, {v(cb)}, {SWS}, 0 offen sc1")]
        P.cf_addr(g, sCG, vCF, vCF4)
        g(f"s_cmp_eq_u32 s{sWM_}, 4"); g(f"s_cselect_b64 s[{mX}:{mX+1}], -1, 0"); g(f"s_cselect_b32 s{sWM_}, 0, s{sWM_}"); g(f"v_cndmask_b32 {v(t[3])}, {v(vCF)}, {v(vCF4)}, s[{mX}:{mX+1}]"); g(f"v_or_b32 {v(t[3])}, s{sIN3}, {v(t[3])}")
        g(f"s_add_u32 s{sT0}, s{sWS_}, 36"); g(f"s_mul_i32 s{sT0}, s{sT0}, 4608"); g(f"s_lshl_b32 s{sT1}, s{sWM_}, 10"); g(f"s_add_u32 s{sT0}, s{sT0}, s{sT1}")
        cst.append(g(f"buffer_store_dwordx4 {v(wt,4)}, {v(t[3])}, {SWS}, s{sT0} offen sc1"))
        V.rel(ct, 4); V.rel(cc); V.rel(cr_, 4); V.rel(ci_, 4); V.rel(co_); V.rel(wt, 4)
        for x in pc: V.rel(x)
        aK, aV = t[4], t[5]; vKS = [t[6], t[7]]
        g(f"s_cmp_eq_u32 s{sODD}, 0"); g(f"s_cselect_b32 s{mX}, -1, 0x000f000f"); g(f"s_cselect_b32 s{mX+1}, 0xffff, s{mX}"); g(f"s_cselect_b32 s{sT0}, 16, 4"); g(f"s_cselect_b32 s{sT1}, 0, 96"); g(f"s_cselect_b32 s{mY}, 48, 16")
        g(f"v_mad_u32_u24 {v(t[3])}, {v(vG)}, s{sT0}, {v(vN)}"); g(f"v_add_u32 {v(t[3])}, s{sT1}, {v(t[3])}")
        g(f"s_lshl_b32 s{sT0}, s{sJ}, 16"); g(f"s_add_u32 s{sT0}, s{sT0}, {KVP_OFF}"); g(f"s_lshl_b32 s{sT1}, s{sC}, 10"); g(f"s_add_u32 s{sT1}, s{sT1}, s{sT0}")
        g(f"s_lshr_b32 s{sT0}, s{sW}, 1"); g(f"s_lshl_b32 s{sT0}, s{sT0}, 15"); g(f"s_add_u32 s{sT1}, s{sT1}, s{sT0}")
        for hf in range(2):
            if hf: g(f"v_add_u32 {v(t[3])}, s{mY}, {v(t[3])}")
            g(f"v_lshrrev_b32 {v(t[1])}, 6, {v(t[3])}"); g(f"v_and_b32 {v(t[2])}, 63, {v(t[3])}"); g(f"v_lshl_add_u32 {v(t[2])}, {v(t[2])}, 4, s{sT1}"); g(f"v_lshl_add_u32 {v(t[2])}, {v(t[1])}, 14, {v(t[2])}")
            g(f"v_cndmask_b32 {v(vKS[hf])}, {v(vOOB)}, {v(t[2])}, s[{mX}:{mX+1}]")
        g(f"v_lshrrev_b32 {v(t[3])}, 2, {v(vL)}"); g(f"v_mul_u32_u24 {v(t[3])}, {PKP}, {v(t[3])}"); g(f"v_lshl_add_u32 {v(t[3])}, {v(vN3)}, 3, {v(t[3])}")
        g(f"s_lshr_b32 s{sT0}, s{sW}, 1"); g(f"s_mul_i32 s{sT0}, s{sT0}, 112"); g(f"s_add_u32 s{sT0}, s{sT0}, {PK}")
        g(f"s_lshl_b32 s{sT1}, s{sODD}, 5"); g(f"s_add_u32 s{sT1}, s{sT1}, s{sT0}")
        g(f"v_add_u32 {v(aK)}, s{sT0}, {v(t[3])}"); g(f"v_add_u32 {v(aV)}, s{sT1}, {v(t[3])}")
        glue(W); ts, tot = est(W.b); print("A phase-I work est", tot)
        F0_B = O.get("f0_b", 2); FC_B = O.get("fc_b", 7); PC_B = O.get("pc_b", 6)
        g = G; k = 0; xt = None
        for b in range(10):
            k0 = k; lim = 1e9 if b in (0, 9) else O.get("ch", 300)
            while k < len(W.b) and ts[k] - ts[k0] < lim and not (W.b[k][0].t.startswith("; @") and int(W.b[k][0].t[3:]) >= b): G.b.append(W.b[k]); k += 1
            if O.get("fine"): P.stamp(g, f"a{b}")
            g.wait(xt, pst if b == F0_B else None, cst if b == FC_B else None, crd if b == PC_B else None)
            if b == 9: g.waitall(lg=True)
            if O.get("fine"): P.stamp(g, f"w{b}")
            g("s_barrier")
            if b < 9:
                for ka in range(2):
                    for T in range(2): xt = g(f"ds_read_b128 {XF(2*b+ka,T)}, {v(vFX1 if ka else vFX0)} offset:{R_X + (b % NR)*16384 + T*2048}")
            if b == F0_B: P.flag_w0(g, 0)
            if b == FC_B: P.flag_w0(g, 128)
        V.rel(vFX0); V.rel(vFX1)
        g(f"s_setprio {O.get('prioA', 2)}")
        P.stamp(g, "ph1")
        fb = V.get(40); accQ = Blk([V.get(4)]); accK = V.get(20); accV = V.get(16)
        def AA(T, tl):
            if tl < 2: return accK + (2*tl+T)*4
            if tl == 2: return accK + 16 if T == 0 else accQ
            if tl < 5: return accV + (2*(tl-3)+T)*4
            return accQ + 4 + (2*(tl-5)+T)*4
        def kv_reads(st):
            it, ka = st >> 1, st & 1; b = fb + (st & 1)*20
            if it < 3 or it > 6: return [f"ds_read_b128 {v(b+4*tl,4)}, {v(vW2 if tl == 2 else vW1)} offset:{kv_lds(it) - WB + (ka*5+tl)*1024}" for tl in range(5)]
            return [f"ds_read_b128 {v(b+4*tl,4)}, {v(vT2 if tl == 2 else vL16)} offset:{kv_lds(it) + (ka*5+tl)*1024}" for tl in range(5)]
        K1 = O.get("k1", 3)
        L = []
        for it in range(KS_, 9):
            L += [f"s_mul_i32 s{sD3}, s{sSL[it]}, 10240\ns_add_u32 s{sD3}, s{sD3}, s{sWG}\ns_add_u32 m0, s{sWM}, {kv_lds(it)}",
                  f"buffer_load_dwordx4 {v(vL16)}, {SWS}, s{sD3} offen sc1 lds", f"buffer_load_dwordx4 {v(vL16)}, {SWS}, s{sD3} offen offset:1024 sc1 lds",
                  f"s_mov_b32 exec_hi, 0\nbuffer_load_dwordx4 {v(vL16)}, {SWS}, s{sD3} offen offset:2048 sc1 lds\ns_mov_b32 exec_hi, -1"]
        WL, wk8 = items(L); L = []
        for it in range(9): L += [f"s_lshl_b32 s{sD3}, s{sSL[it]}, 12\ns_add_u32 s{sD3}, s{sD3}, s{sWGq}\ns_add_u32 m0, s{sWMq}, {q_lds(it)}", f"buffer_load_dwordx4 {v(vL16)}, {SWS}, s{sD3} offen sc1 lds"]
        x, wq8 = items(L); WL += x
        rt = [g(x) for x in kv_reads(0)][-1]; cur = []
        for st in range(18):
            g.wait(rt)
            if O.get("finek") and st in (2,4,5,6,8,10,11,12,14,16): P.stamp(g, f"k{st}")
            if st == 2*K1 - 1: P.lw_check(g, 1, E_W1)
            if st == 2*KS_ - 1: P.lw_check(g, 0, A_W3)
            rq = kv_reads(st+1) if st < 17 else []
            b = fb + (st & 1)*20
            for tl in range(5):
                for T in range(2):
                    g(f"{MF} {v(AA(T,tl),4)}, {v(b+4*tl,4)}, {XF(st,T)}, {'0' if st == 0 else v(AA(T,tl),4)}")
                    n = 2*tl + T
                    if rq: rt = g(rq.pop(0))
                    elif n == 5 and st == 2*K1 - 2: rt = P.lw_issue(g, 1)
                    elif n == 5 and st == 2*KS_ - 2: rt = P.lw_issue(g, 0)
                    elif n == 5 and st == 2*KS_ - 3: g.wait(wk8); P.sig(g, A_W3)
                    elif n == 5 and st == 14: g.wait(wq8); P.sig(g, A_S6)
                    elif n == 5 and st == 17: P.lw_issue(g, 0)
                    elif cur: cur.pop(0)(g)
                    elif WL and n in (6, 8): cur = list(WL.pop(0)); cur.pop(0)(g)
        V.rel(fb); V.rel(vT2)
        P.stamp(g, "kvgemm")
        def swaps(g, tiles):
            for tl in tiles:
                for k in range(4): g(f"v_permlane32_swap_b32 {v(AA(0,tl)+k)}, {v(AA(1,tl)+k)}")
        def softmax(g, vals, out, hook=None, perm=False):
            en = V.get(20); mm = V.get(4)
            E = lambda i: vals[i] if i < 18 else en + (i - 18)
            g(f"v_max3_f32 {v(mm)}, {v(vals[0])}, {v(vals[1])}, {v(vals[2])}"); g(f"v_min3_f32 {v(mm+1)}, {v(vals[0])}, {v(vals[1])}, {v(vals[2])}")
            for i in range(3, 17, 2):
                g(f"v_max3_f32 {v(mm)}, {v(mm)}, {v(vals[i])}, {v(vals[i+1])}"); g(f"v_min3_f32 {v(mm+1)}, {v(mm+1)}, {v(vals[i])}, {v(vals[i+1])}")
            g(f"v_max_f32 {v(mm)}, {v(mm)}, {v(vals[17])}"); g(f"v_min_f32 {v(mm+1)}, {v(mm+1)}, {v(vals[17])}")
            g(f"v_pk_mul_f32 {v(mm,2)}, {v(mm,2)}, s[{sL2E}:{sL2E+1}]")
            for i in range(9):
                g(f"v_pk_fma_f32 {v(E(18+2*i),2)}, {v(vals[2*i],2)}, s[{sL2E}:{sL2E+1}], {v(mm,2)} op_sel:[0,0,1] op_sel_hi:[1,1,1] neg_lo:[1,0,0] neg_hi:[1,0,0]")
                g(f"v_pk_fma_f32 {v(E(2*i),2)}, {v(vals[2*i],2)}, s[{sL2E}:{sL2E+1}], {v(mm,2)} op_sel:[0,0,0] op_sel_hi:[1,1,0] neg_lo:[0,0,1] neg_hi:[0,0,1]")
            for i in range(36): g(f"v_exp_f32 {v(E(i))}, {v(E(i))}")
            for h in range(2): g(f"v_pk_add_f32 {v(mm+2*h,2)}, {v(E(18*h),2)}, {v(E(18*h+2),2)}")
            for i in range(2, 9):
                for h in range(2): g(f"v_pk_add_f32 {v(mm+2*h,2)}, {v(mm+2*h,2)}, {v(E(18*h+2*i),2)}")
            g(f"v_add_f32 {v(mm)}, {v(mm)}, {v(mm+1)}"); g(f"v_add_f32 {v(mm+1)}, {v(mm+2)}, {v(mm+3)}")
            g(f"v_rcp_f32 {v(mm)}, {v(mm)}"); g(f"v_rcp_f32 {v(mm+1)}, {v(mm+1)}")
            for sd in range(18):
                i = (6*((sd % 6) >> 1) + 2*(sd // 6) + (sd & 1)) if perm else sd
                h = i // 9
                g(f"v_pk_mul_f32 {v(E(2*i),2)}, {v(E(2*i),2)}, {v(mm,2)} op_sel:[0,{h}] op_sel_hi:[1,{h}]")
                g(f"v_cvt_pk_bf16_f32 {v(out+sd)}, {v(E(2*i))}, {v(E(2*i+1))}")
                if hook: hook(sd)
            V.rel(en); V.rel(mm, 4)
        pk = V.get(20)
        P.lw_check(g, 0, A_S6)
        swaps(g, range(3))
        for tl in (3, 4):
            for T in range(2):
                o = AA(T,tl)
                g(f"v_cvt_pk_bf16_f32 {v(o)}, {v(o)}, {v(o+1)}"); g(f"v_cvt_pk_bf16_f32 {v(o+1)}, {v(o+2)}, {v(o+3)}")
        g(f"v_cvt_pk_bf16_f32 {v(pk+18)}, {v(AA(0,2)+2)}, {v(AA(0,2)+3)}"); g(f"v_mov_b32 {v(pk+19)}, 0x3f80")
        for T in range(2): g(f"ds_write2_b64 {v(vPVW)}, {v(AA(T,3),2)}, {v(AA(T,4),2)} offset0:9 offset1:11" if T == 0 else f"ds_write_b64 {v(vPVW)}, {v(AA(T,3),2)} offset:{72+16*PKP}\nds_write_b64 {v(vPVW)}, {v(AA(T,4),2)} offset:{88+16*PKP}")
        V.rel(accV)
        kvals = [AA((p >> 2) & 1, p >> 3) + (p & 3) for p in range(18)]
        def khook(i):
            if i % 4 == 3: g(f"ds_write_b128 {v(vPKW)}, {v(pk+i-3,4)} offset:{4*(i-3)}")
            if i == 17: g(f"ds_write2_b64 {v(vPKW)}, {v(pk+16,2)}, {v(pk+18,2)} offset0:8 offset1:13")
        softmax(g, kvals, pk, khook)
        P.sig(g, A_PK)
        V.rel(accK); V.rel(pk)
        for x in (vW1, vW2, vPKW, vPVW): V.rel(x)
        P.stamp(g, "ksm")
        P.lwait(g, 0, A_PK)
        kf = V.get(48); kd = V.get(12); ko = V.get(8)
        def kvr(st):
            b = kf + (st % 3)*16
            L = [f"ds_read_b64_tr_b16 {v(b+12+2*hf,2)}, {v(aV)} offset:{72 + (32*st + 16*hf)*PKP}" for hf in range(2)]
            return L + [f"ds_read_b64_tr_b16 {v(b+m*4+2*hf,2)}, {v(aK)} offset:{(32*st + 16*hf)*PKP + 24*m}" for m in range(3) for hf in range(2)]
        tk = [[g(x) for x in kvr(0)][-1]]; tk.append([g(x) for x in kvr(1)][-1])
        for st in range(4):
            rq = kvr(st+2) if st < 2 else []
            b = kf + (st % 3)*16
            g.wait(tk[st])
            for m in range(3):
                g(f"{MF} {v(kd+4*m,4)}, {v(b+m*4,4)}, {v(b+12,4)}, {'0' if st == 0 else v(kd+4*m,4)}")
                for _ in range(3):
                    if rq: x = g(rq.pop(0))
            tk.append(x)
        P.lw_issue(g, 1)
        g(f"v_mov_b32 {v(ko+3)}, {v(vTAG)}"); g(f"v_mov_b32 {v(ko+7)}, {v(vTAG)}")
        V.rel(kf); accQ.q += V.get(16).q
        fb = V.get(32); vWQ = t[1]
        g(f"v_add_u32 {v(vWQ)}, {WQ2}, {v(vL16)}")
        for i in range(6): g(f"v_cvt_pk_bf16_f32 {v(ko + (i//3)*4 + i%3)}, {v(kd+2*i)}, {v(kd+2*i+1)}")
        for hf in range(2): g(f"buffer_store_dwordx4 {v(ko+4*hf,4)}, {v(vKS[hf])}, {SWS}, 0 offen sc1")
        P.sig(g, A_KV)
        V.rel(kd)
        P.stamp(g, "kvpub")
        P.lw_check(g, 1, E_FC)
        def q_reads(st): return [f"ds_read_b128 {v(fb+(st&3)*8+4*tl,4)}, {v(vWQ if st >= 8 else vL16)} offset:{(st if st < 8 else st-8)*2048 + tl*1024}" for tl in range(2)]
        rt = [g(x) for x in q_reads(0) + q_reads(1)][-1]
        BF = {}; L = []
        for p in range(5):
            if 0 < p < 4: L.append(f"s_add_u32 s{sCST}, s{sCST}, 4608")
            so = sD if p == 4 else sCST
            for m in range(5):
                rg = a(xf + (p*5+m)*4, 4); BF[(p, m)] = rg
                L.append(f"buffer_load_dwordx4 {rg}, {v(vCF)}, {SWS}, s{so} offen offset:{1024*m} sc1" if m < 4 else f"buffer_load_dwordx4 {rg}, {v(vCF4)}, {SWS}, s{so} offen sc1")
        WQI, _ = items(L)
        g = Stream(); FL = g
        vPQW, vPQR0, vPQR2, vGTR, vGTW, vOS, vOSH, vPR = V.grp(8); vKR = V.get(3)
        g(f"v_and_b32 {v(t[2])}, 1, {v(vG)}")
        g(f"s_lshl_b32 s{sT0}, s{sW}, 5"); g(f"v_add_u32 {v(t[3])}, s{sT0}, {v(vN)}"); g(f"v_lshrrev_b32 {v(t[4])}, 1, {v(vG)}"); g(f"v_lshl_add_u32 {v(t[5])}, {v(t[4])}, 4, {v(t[3])}")
        g(f"s_mov_b32 s{sT1}, {PQ}")
        g(f"v_mul_u32_u24 {v(vPQW)}, {PQP}, {v(t[5])}"); g(f"v_mul_u32_u24 {v(t[6])}, 80, {v(t[2])}"); g(f"v_add3_u32 {v(vPQW)}, {v(vPQW)}, {v(t[6])}, s{sT1}")
        g(f"v_mul_u32_u24 {v(t[6])}, {PQP}, {v(t[3])}"); g(f"v_add_u32 {v(t[6])}, s{sT1}, {v(t[6])}"); g(f"v_lshl_add_u32 {v(vPQR0)}, {v(vG)}, 4, {v(t[6])}"); g(f"v_lshl_add_u32 {v(vPQR2)}, {v(t[2])}, 4, {v(t[6])}")
        g(f"s_lshl_b32 s{sT0}, s{sW}, 7"); g(f"s_add_u32 s{sT0}, s{sT0}, {GT}"); g(f"v_lshl_add_u32 {v(vGTR)}, {v(vTOK)}, 2, s{sT0}"); g(f"v_lshl_add_u32 {v(vGTW)}, {v(t[4])}, 4, {v(vGTR)}")
        g(f"v_lshrrev_b32 {v(t[3])}, 2, {v(vL)}")
        g(f"s_lshl_b32 s{sT0}, s{sC}, 13"); g(f"s_add_u32 s{sT0}, s{sT0}, {FL_OFF}"); g(f"v_lshl_add_u32 {v(vPR)}, {v(t[3])}, 9, s{sT0}")
        g(f"s_mul_i32 s{sT0}, s{sU}, 36864"); g(f"s_add_u32 s{sT0}, s{sT0}, {AO_OFF}")
        g(f"s_lshl_b32 s{sT1}, s{sJ}, 10"); g(f"s_add_u32 s{sT1}, s{sT1}, s{sT0}"); g(f"v_add_u32 {v(vOS)}, s{sT1}, {v(vL16)}")
        g(f"s_lshl_b32 s{sT1}, s{sJ}, 7"); g(f"s_add_u32 s{sT1}, s{sT1}, s{sT0}"); g(f"s_add_u32 s{sT1}, s{sT1}, 16384")
        g(f"v_lshl_add_u32 {v(t[5])}, {v(vN)}, 3, s{sT1}"); g(f"v_lshl_add_u32 {v(t[5])}, {v(t[2])}, 2, {v(t[5])}"); g(f"v_mad_u32_u24 {v(vOSH)}, {v(t[4])}, s{sH1}, {v(t[5])}")
        g(f"s_movk_i32 s{sT1}, {KVAP}"); g(f"v_lshlrev_b32 {v(t[6])}, 4, {v(vG)}"); g(f"v_add_u32 {v(t[6])}, {KVA}, {v(t[6])}")
        for m in range(2):
            g(f"v_add_u32 {v(t[3])}, {14+4*m}, {v(vTOK)}"); g(f"v_lshrrev_b32 {v(t[3])}, 5, {v(t[3])}"); g(f"v_add3_u32 {v(t[3])}, {v(t[3])}, {v(vTOK)}, {4*m}"); g(f"v_mad_u32_u24 {v(vKR+m)}, {v(t[3])}, s{sT1}, {v(t[6])}")
        g(f"s_mov_b32 s{mX}, 0x33333333"); g(f"s_mov_b32 s{mX+1}, 0x33333333")
        g(f"v_lshrrev_b32 {v(t[3])}, 1, {v(vN)}"); g(f"v_and_b32 {v(t[3])}, 2, {v(t[3])}"); g(f"v_and_b32 {v(t[5])}, 1, {v(vN)}"); g(f"v_add3_u32 {v(t[3])}, {v(t[3])}, {v(t[5])}, 33")
        g(f"v_mad_u32_u24 {v(t[5])}, {v(t[5])}, 19, 18"); g(f"v_cndmask_b32 {v(t[3])}, {v(t[3])}, {v(t[5])}, s[{mX}:{mX+1}]"); g(f"v_mad_u32_u24 {v(vKR+2)}, {v(t[3])}, s{sT1}, {v(t[6])}")
        sHM = [mX, mY]
        g(f"s_mov_b32 s{sHM[0]}, 0"); g(f"s_mov_b32 s{sHM[0]+1}, 0xffff0000"); g(f"s_mov_b32 s{sHM[1]}, 0"); g(f"s_mov_b32 s{sHM[1]+1}, -1")
        g = Stream(); cur = []; nwq = 0
        for it in range(9):
            g.wait(rt)
            rq = (q_reads(2*it+2) + q_reads(2*it+3)) if it < 8 else []
            for st in (2*it, 2*it+1):
                for tl in range(2):
                    for T in range(2):
                        g(f"{MF} {v(AA(T,5+tl),4)}, {v(fb+(st&3)*8+4*tl,4)}, {XF(st,T)}, {'0' if st == 0 else v(AA(T,5+tl),4)}")
                        if rq: rt = g(rq.pop(0))
                        elif it == 8 and st == 17 and tl == 0 and T == 0: P.lw_issue(g, 0)
                        elif cur: cur.pop(0)(g)
                        elif it >= 1 and st & 1 and T == 0 and nwq < O.get("nwq", 0): cur = list(WQI.pop(0)); cur.pop(0)(g); nwq += 1
        x = merge(g, FL); print("q fill left", len(x.left.flat())); G.add(x); g = G
        V.rel(fb); V.rel(ko)
        P.stamp(g, "qgemm")
        g = Stream(); QS = g
        P.lw_check(g, 0, A_KV)
        swaps(g, (5, 6))
        pq = V.get(20); omg = V.get(2)
        gv = AA(1,6) + 2
        g(f"v_mul_f32 {v(gv)}, 0xbfb8aa3b, {v(gv)}"); g(f"v_exp_f32 {v(gv)}, {v(gv)}"); g(f"v_mov_b64 {v(pq+18,2)}, 0"); g(f"v_add_f32 {v(gv)}, 1.0, {v(gv)}"); g(f"v_rcp_f32 {v(gv)}, {v(gv)}")
        g("s_nop 0"); g(f"ds_write_b32 {v(vGTW)}, {v(gv)}"); P.sig(g, A_GT)
        g(f"ds_read2_b32 {v(omg,2)}, {v(vGTR)} offset0:0 offset1:4")
        qvals = [accQ + p for p in range(18)]
        def qhook(i):
            if i % 4 == 3 or i == 17: g(f"ds_write_b128 {v(vPQW)}, {v(pq+(i&~3),4)} offset:{4*(i&~3)}")
        softmax(g, qvals, pq, qhook, perm=True)
        V.rel(accQ); V.rel(pq)
        qf = V.get(24)
        for T in range(2):
            for ka in range(3): g(f"ds_read_b128 {v(qf+(T*3+ka)*4,4)}, {v(vPQR2 if ka == 2 else vPQR0)} offset:{16*PQP*T + 64*ka}")
        for T in range(2): g(f"v_sub_f32 {v(omg+T)}, 1.0, {v(omg+T)}")
        G.add(QS); g = G
        P.stamp(g, "qsm")
        emit_items(g, WQI, O.get("nw0", 4))
        P.lwait(g, 1, E_KVA, sleep=1)
        P.stamp(g, "kva")
        od = V.get(24); AFQ = lambda k: r(*XQ(25+k), 4)
        for ka in range(3):
            for m in (2, 0, 1): g(f"ds_read_b128 {AFQ(m*3+ka)}, {v(vKR+m)} offset:{64*ka}")
        for ka in range(3):
            for m in (2, 0, 1):
                for T in range(2): g(f"{MF} {v(od+(T*3+m)*4,4)}, {AFQ(m*3+ka)}, {v(qf+(T*3+ka)*4,4)}, {'0' if ka == 0 else v(od+(T*3+m)*4,4)}")
        V.rel(qf); V.rel(vKR, 3)
        oo = V.get(12); sc = V.get(2); ost = []
        for T in range(2):
            for h in range(2): g(f"v_add_f32 {v(od+(T*3+2)*4+h)}, 0x358637bd, {v(od+(T*3+2)*4+h)}")
        for T in range(2):
            for h in range(2): g(f"v_rcp_f32 {v(od+(T*3+2)*4+h)}, {v(od+(T*3+2)*4+h)}")
        for T in range(2):
            dn = od + (T*3+2)*4
            g(f"v_pk_mul_f32 {v(dn,2)}, {v(dn,2)}, {v(omg,2)} op_sel:[0,{T}] op_sel_hi:[1,{T}]")
            for k in range(2): g(f"v_cndmask_b32 {v(sc+k)}, {v(dn)}, {v(dn+1)}, s[{sHM[k]}:{sHM[k]+1}]")
            for p in range(5):
                src = od + T*12 + 2*p if p < 4 else dn + 2
                h = 0 if p == 0 else 1
                g(f"v_pk_mul_f32 {v(src,2)}, {v(src,2)}, {v(sc if p < 4 else dn,2)} op_sel:[0,{h}] op_sel_hi:[1,{h}]")
                g(f"v_cvt_pk_bf16_f32 {v(oo + (4*T+p if p < 4 else 8+T))}, {v(src)}, {v(src+1)}")
                if p == 3: ost.append(g(f"buffer_store_dwordx4 {v(oo+4*T,4)}, {v(vOS)}, {SWS}, {'s%d' % sH1 if T else '0'} offen sc1"))
        g(f"v_cndmask_b32 {v(oo+8)}, {v(oo+8)}, {v(oo+9)}, s[{sHM[1]}:{sHM[1]+1}]")
        ost.append(g(f"buffer_store_dword {v(oo+8)}, {v(vOSH)}, {SWS}, 0 offen sc1"))
        V.rel(od); V.rel(sc, 2); V.rel(omg, 2)
        g("s_setprio 0")
        P.stamp(g, "opub")
        vAO = [vPQW, vPQR0, vPQR2, vGTR]; pw = [vGTW, vOS]; vAOH = vOSH
        g(f"s_mul_i32 s{sT0}, s{sPB}, 36864"); g(f"s_add_u32 s{sT0}, s{sT0}, {AO_OFF}"); g(f"v_add_u32 {v(vAO[0])}, s{sT0}, {v(vL16)}"); g(f"v_add_u32 {v(vAO[1])}, s{sH1}, {v(vAO[0])}")
        g(f"s_xor_b32 s{sT0}, s{sPB}, 1"); g(f"s_mul_i32 s{sT0}, s{sT0}, 36864"); g(f"s_add_u32 s{sT0}, s{sT0}, {AO_OFF}"); g(f"v_add_u32 {v(vAO[2])}, s{sT0}, {v(vL16)}"); g(f"v_add_u32 {v(vAO[3])}, s{sH1}, {v(vAO[2])}")
        g(f"v_lshlrev_b32 {v(t[4])}, 3, {v(vN)}"); g(f"v_sub_u32 {v(vAOH)}, {v(vAO[0])}, {v(t[4])}")
        g(f"v_mul_u32_u24 {v(t[4])}, {PARTP}, {v(vTOK)}"); g(f"v_lshl_add_u32 {v(t[4])}, {v(vG)}, 4, {v(t[4])}"); g(f"v_add_u32 {v(t[4])}, {PA_OFF}, {v(t[4])}")
        g(f"s_lshl1_add_u32 s{sT0}, s{sW}, s{sODD}"); g(f"s_mul_i32 s{sT1}, s{sT0}, {32*PARTP}"); g(f"v_add_u32 {v(pw[0])}, s{sT1}, {v(t[4])}")
        g(f"s_xor_b32 s{sT0}, s{sT0}, 1"); g(f"s_mul_i32 s{sT1}, s{sT0}, {32*PARTP}"); g(f"v_add_u32 {v(pw[1])}, s{sT1}, {v(t[4])}")
        emit_items(g, WQI, O.get("nw1", 6))
        g.wait(ost); P.flag_last(g, 384, 1)
        V.rel(oo)
        P.stamp(g, "oflag")
        emit_items(g, WQI)
        P.poll1(g, vPR, 384, 0, A_FO, O.get("fosleep", 4))
        P.stamp(g, "fo")
        ou = [(lt, p) for lt in range(4) for p in range(5 if lt < 2 else 4)]
        acc = V.get(40); AC = lambda lt, m: acc + ((lt & 1)*5+m)*4
        obv = V.get(28)
        OB = [XQ(25+k) for k in range(11)] + [("v", obv + 4*k) for k in range(7)]
        for idx, (lt, p) in enumerate(ou):
            pf, b = OB[idx]
            if p < 4: g(f"buffer_load_dwordx4 {r(pf,b,4)}, {v(vAO[lt])}, {SWS}, s{sW0} offen offset:{1024*p} sc1")
            else:
                for h in range(2): g(f"buffer_load_dwordx2 {r(pf,b+2*h,2)}, {v(vAOH)}, {SWS}, s{sW5 if lt else sW4} offen offset:{128*h} sc1")
        if O.get("fineh"): P.stamp(g, "oiss")
        if O.get("fineh"): P.stamp(g, "cld")
        wl = []
        for idx, (lt, p) in enumerate(ou):
            for mm_ in range(5):
                g(f"{MF} {v(AC(lt,mm_),4)}, {BF[(p,mm_)]}, {r(OB[idx][0],OB[idx][1],4)}, {'0' if p == 0 else v(AC(lt,mm_),4)}")
                if p >= 1 and wl and mm_ % 2 == 0: g(wl.pop(0))
            if idx + 1 == len(ou) or ou[idx+1][0] != lt:
                assert not wl
                wl = [f"ds_write_b128 {v(pw[lt>>1])}, {v(AC(lt,mm_),4)} offset:{(lt&1)*4*PARTP + 64*mm_}" for mm_ in range(5)]
                wl[4] = "s_mov_b32 exec_hi, 0\n" + wl[4] + "\ns_mov_b32 exec_hi, -1"
        for x in wl: g(x)
        P.stamp(g, "opart")
        g.waitall(lg=True); g("s_barrier")
        P.finish(g, 0)
        return G

    def pathS(self):
        P = Path(self, "s"); self.PS = P; O = self.opt
        V, A, S, t = P.V, P.A, P.S, P.t
        sC, sJ, sW, sU, sT0, sT1, sT2, sR = P.sC, P.sJ, P.sW, P.sU, P.sT0, P.sT1, P.sT2, P.sR
        vL, vL16, vN, vG, vN3, vR2, vTOK, vOOB, vTAG = P.vL, P.vL16, P.vN, P.vG, P.vN3, P.vR2, P.vTOK, P.vOOB, P.vTAG
        G = self.common(P); g = G
        g(f"s_and_b32 s{sT0}, s2, 0xf8"); g(f"v_bfe_u32 {v(t[0])}, v0, 5, 3"); g(f"v_add_lshl_u32 {v(t[0])}, {v(t[0])}, s{sT0}, 7"); g(f"global_load_dword {v(t[1])}, {v(t[0])}, s[58:59]")
        self.ids(g, P)
        g("v_and_b32 v0, 255, v0")
        S.free |= set(range(20, 28)) | set(range(32, 44)) | {56, 57, 58, 59}
        accS = V.get(40); AS = lambda T, i: accS + (T*5+i)*4
        gs = V.grp(16); vX = gs[:4]; vBre, vBim = gs[4:6]; vFX0, vFX1, vFB0, vFB1, vT40, vT41 = gs[6:12]; pr = gs[12:15]; vPC = gs[15]
        sCH1, sCH2, sD = S.get(), S.get(), S.get()
        vSW = t[6]
        g(f"v_lshrrev_b32 {v(t[2])}, 3, {v(vL)}"); g(f"v_xor_b32 {v(vSW)}, {v(vL16)}, {v(vL)}"); g(f"v_and_b32 {v(vSW)}, 0x70, {v(vSW)}")
        g(f"v_mul_u32_u24 {v(t[5])}, 1152, {v(t[2])}"); g(f"v_add_u32 {v(vSW)}, {v(vSW)}, {v(t[5])}")
        g(f"v_lshrrev_b32 {v(t[5])}, 5, {v(vL)}"); g(f"v_mul_u32_u24 {v(t[5])}, 4608, {v(t[5])}"); g(f"s_mul_i32 s{sT0}, s{sU}, {32*1152}")
        g(f"v_add3_u32 {v(vX[0])}, {v(vSW)}, {v(t[5])}, s{sT0}"); g(f"v_xor_b32 {v(vX[1])}, 64, {v(vX[0])}")
        g(f"v_add_u32 {v(vX[2])}, {4608-2048}, {v(vX[0])}"); g(f"v_add_u32 {v(vX[3])}, {16*1152+4608-3072}, {v(vX[1])}"); g(f"v_add_u32 {v(vX[1])}, {16*1152-1024}, {v(vX[1])}")
        sSL = [S.get() for _ in range(9)]
        g(f"s_lshr_b32 s{sT0}, s{sJ}, 2"); g(f"s_mul_i32 s{sT0}, s{sT0}, {self.rot[1]}"); g(f"s_mul_i32 s{sT2}, s{sC}, {self.rot[0]}"); g(f"s_add_u32 s{sT0}, s{sT0}, s{sT2}")
        g(f"s_mul_i32 s{sT2}, s{sT0}, 57"); g(f"s_lshr_b32 s{sT2}, s{sT2}, 9"); g(f"s_mul_i32 s{sT2}, s{sT2}, 9"); g(f"s_sub_u32 s{sT0}, s{sT0}, s{sT2}"); g(f"s_lshl_b32 s{sSL[0]}, s{sT0}, 7")
        def sl_next(g, it): g(f"s_add_u32 s{sSL[it]}, s{sSL[it-1]}, 128"); g(f"s_cmp_eq_u32 s{sSL[it]}, 1152"); g(f"s_cselect_b32 s{sSL[it]}, 0, s{sSL[it]}")
        sXM, sBM = S.get(), S.get()
        g(f"s_lshl_b32 s{sXM}, s{sW}, 12"); g(f"s_lshl_b32 s{sBM}, s{sW}, 11")
        w23(g, 4, 2048*1152); w23(g, 8, 576*1152); w23(g, 12, 576*1152+1024); w23(g, 16, 576*1152)
        g(f"s_and_b32 s{sT0}, s{sJ}, 1"); g(f"s_mul_i32 s{sCH2}, s{sJ}, 36"); g(f"s_lshl2_add_u32 s{sCH1}, s{sT0}, s{sCH2}")
        g(f"s_xor_b32 s{sT0}, s{sT0}, 1"); g(f"s_lshl_b32 s{sT0}, s{sT0}, 5"); g(f"s_add_u32 s{sCH2}, s{sCH2}, s{sT0}")
        g(f"s_lshl3_add_u32 s{sT0}, s{sW}, s{sCH1}"); g(f"s_mul_i32 s{sT0}, s{sT0}, 1152"); g(f"v_add_u32 {v(vBre)}, s{sT0}, {v(vSW)}"); g(f"v_xor_b32 {v(vBim)}, 64, {v(vBre)}")
        g("s_waitcnt lgkmcnt(0)")
        P.stamp(g, "karg")
        g(f"s_load_dword s{P.sTAG}, s[28:29], 0")
        g("s_mov_b64 s[8:9], s[84:85]"); g(f"s_bitcmp1_b32 s{sW}, 0"); g("s_cselect_b64 s[16:17], s[86:87], s[84:85]"); g("s_sub_u32 s12, s86, 1024"); g("s_subb_u32 s13, s87, 0")
        S.free |= set(range(84, 100))
        def slab_dma(it):
            ring = it % NR
            L = [f"s_add_u32 m0, s{sXM}, {R_X + ring*16384}"]
            L += [f"buffer_load_dwordx4 {v(vX[i])}, {SX}, s{sSL[it]} offen offset:{1024*i} lds" for i in range(4)]
            L += [f"s_add_u32 m0, s{sBM}, {R_B + ring*8192}", f"buffer_load_dwordx4 {v(vBre)}, {SBRE}, s{sSL[it]} offen lds", f"buffer_load_dwordx4 {v(vBim)}, {SBIM}, s{sSL[it]} offen offset:1024 lds"]
            return L
        slab = {}
        P2 = Stream(); g = P2
        pv_ = V.grp(4); sT4 = S.get(); mT = S.get(2)
        g(f"v_bfe_u32 {v(t[3])}, {v(vL)}, 3, 2"); g(f"v_add_u32 {v(t[4])}, s{sCH2}, {v(t[3])}"); g(f"v_mul_u32_u24 {v(t[4])}, 1152, {v(t[4])}")
        g(f"s_and_b32 s{sT0}, s{sW}, 1"); g(f"s_lshl_b32 s{sT1}, s{sT0}, 2"); g(f"v_and_or_b32 {v(t[3])}, {v(t[3])}, 2, s{sT1}")
        g(f"v_xor_b32 {v(t[3])}, {v(t[3])}, {v(vL)}"); g(f"v_and_b32 {v(t[3])}, 7, {v(t[3])}"); g(f"v_lshl_add_u32 {v(t[4])}, {v(t[3])}, 4, {v(t[4])}")
        g(f"s_lshr_b32 s{sT1}, s{sW}, 1"); g(f"s_lshl_b32 s{sT2}, s{sT1}, 8"); g(f"v_lshrrev_b32 {v(t[3])}, 5, {v(vL)}"); g(f"v_lshl_add_u32 {v(t[3])}, {v(t[3])}, 7, s{sT2}")
        g(f"s_mul_i32 s{sT0}, s{sT0}, 6144"); g(f"s_lshl_b32 s{sT1}, s{sT1}, 10"); g(f"s_add_u32 s{sT4}, s{sT0}, s{sT1}")
        T4I = []
        for k in range(3):
            g(f"v_add_u32 {v(t[5])}, {512*k}, {v(t[3])}")
            if k == 2: g(f"v_cmp_eq_u32 s[{mT}:{mT+1}], 0, {v(t[3])}")
            g(f"v_add_u32 {v(t[5])}, s{sSL[0]}, {v(t[5])}"); g(f"v_subrev_u32 {v(t[6])}, 1152, {v(t[5])}"); g(f"v_min_u32 {v(t[5])}, {v(t[5])}, {v(t[6])}")
            g(f"v_add_u32 {v(pv_[k])}, {v(t[5])}, {v(t[4])}")
            if k == 2: g(f"v_cndmask_b32 {v(pv_[k])}, {v(vOOB)}, {v(pv_[k])}, s[{mT}:{mT+1}]")
            T4I.append([f"s_add_u32 m0, s{sT4}, {T4 + 2048*k}", f"buffer_load_dwordx4 {v(pv_[k])}, {ST4}, 0 offen lds"])
        for it in range(1, 9): sl_next(g, it)
        P.lanes(g)
        g(f"s_sub_u32 s{sT2}, s{sCH2}, 32"); g(f"s_mov_b32 s{mT}, -1"); g(f"s_mov_b32 s{mT+1}, 0")
        g(f"v_add_u32 {v(t[2])}, s{sCH1}, {v(vL)}"); g(f"v_add_u32 {v(t[3])}, s{sT2}, {v(vL)}"); g(f"v_cndmask_b32 {v(t[2])}, {v(t[3])}, {v(t[2])}, s[{mT}:{mT+1}]")
        g(f"v_min_u32 {v(t[2])}, 575, {v(t[2])}"); g(f"v_lshlrev_b32 {v(pv_[3])}, 1, {v(t[2])}")
        PRL = "\n".join(f"global_load_ushort {v(pr[k])}, {v(pv_[3])}, s[{p}:{p+1}]" for k, p in enumerate((48, 50, 52)))
        g(f"v_lshrrev_b32 {v(t[3])}, 1, {v(vN)}"); g(f"v_xor_b32 {v(t[3])}, {v(t[3])}, {v(vG)}"); g(f"v_lshlrev_b32 {v(t[3])}, 4, {v(t[3])}"); g(f"v_lshl_add_u32 {v(t[3])}, {v(vN)}, 7, {v(t[3])}")
        g(f"v_add_u32 {v(vFX0)}, s{sXM}, {v(t[3])}"); g(f"v_xor_b32 {v(vFX1)}, 64, {v(vFX0)}"); g(f"v_add_u32 {v(vFB0)}, {R_B}, {v(t[3])}"); g(f"v_xor_b32 {v(vFB1)}, 64, {v(vFB0)}")
        g(f"v_lshrrev_b32 {v(t[6])}, 3, {v(vN)}"); g(f"v_lshl_add_u32 {v(t[2])}, {v(t[6])}, 2, {v(vN3)}")
        g(f"v_and_b32 {v(t[3])}, 6, {v(t[2])}"); g(f"v_xor_b32 {v(t[3])}, {v(t[3])}, {v(vG)}"); g(f"v_lshlrev_b32 {v(t[3])}, 4, {v(t[3])}"); g(f"v_lshl_add_u32 {v(t[3])}, {v(vN3)}, 7, {v(t[3])}")
        g(f"v_mul_u32_u24 {v(vT40)}, 6144, {v(t[6])}"); g(f"v_add_u32 {v(t[3])}, {T4}, {v(t[3])}"); g(f"v_add_u32 {v(vT40)}, {v(vT40)}, {v(t[3])}"); g(f"v_xor_b32 {v(vT41)}, 64, {v(vT40)}")
        w23(g, 28, WS_SIZE); w23(g, 44, 2048*576*4)
        P.sync_setup(g, 1)
        vWG, vWGq, vPG, vPR = V.grp(4); sWM, sWMq, sTH, sCG = [S.get() for _ in range(4)]
        g(f"s_lshl_b32 s{sT1}, s{sJ}, 17"); g(f"s_add_u32 s{sT1}, s{sT1}, {WP_OFF}")
        g(f"s_mul_i32 s{sWM}, s{sW}, 2560"); g(f"s_add_u32 s{sT0}, s{sWM}, s{sT1}"); g(f"v_add_u32 {v(vWG)}, s{sT0}, {v(vL16)}")
        g(f"s_lshl_b32 s{sWMq}, s{sW}, 10"); g(f"s_add_u32 s{sT0}, s{sWMq}, s{sT1}"); g(f"s_add_u32 s{sT0}, s{sT0}, {WPQ}"); g(f"v_add_u32 {v(vWGq)}, s{sT0}, {v(vL16)}")
        g(f"s_bfe_u32 s{sTH}, s2, 0x10001"); g(f"s_bfe_u32 s{sT0}, s2, 0x10002"); g(f"s_lshl2_add_u32 s{sCG}, s{sT0}, s{sR}")
        g(f"s_lshl3_add_u32 s{sT0}, s{sT0}, s{sR}"); g(f"s_lshl_b32 s{sT0}, s{sT0}, 9"); g(f"s_add_u32 s{sT0}, s{sT0}, {FL_OFF}")
        g(f"v_bfe_u32 {v(t[2])}, {v(vL)}, 1, 1"); g(f"v_lshl_add_u32 {v(vPG)}, {v(t[2])}, 11, s{sT0}"); g(f"v_lshrrev_b32 {v(t[2])}, 2, {v(vL)}"); g(f"v_lshl_add_u32 {v(vPG)}, {v(t[2])}, 13, {v(vPG)}")
        g(f"s_lshl_b32 s{sT0}, s{sC}, 13"); g(f"s_add_u32 s{sT0}, s{sT0}, {FL_OFF}"); g(f"v_lshl_add_u32 {v(vPR)}, {v(t[2])}, 9, s{sT0}")
        g(f"s_lshl_b32 s{sT0}, s{sJ}, 9"); g(f"s_add_u32 s{sT0}, s{sT0}, {FL_OFF}"); g(f"v_lshl_add_u32 {v(vPC)}, {v(t[2])}, 13, s{sT0}")
        P.tag(g)
        PQI, slab[0] = items(slab_dma(0) + T4I[0])
        x, slab[1] = items(slab_dma(1)); PQI += x
        x2, slab[2] = items(slab_dma(2)); x3, slab[3] = items([PRL] + slab_dma(3) + T4I[1] + T4I[2])
        G.add(pace(P2, PQI, O.get("p1int", 40), t0=0)); g = G
        emit_items(g, x2, O.get("n2", 6))
        P.stamp(g, "sh0")
        f = Stream(); g = f
        sSCR = S.get(); g(f"s_mul_i32 s{sSCR}, s{sW}, {SCRP}"); g(f"s_add_u32 s{sSCR}, s{sSCR}, {SCR}")
        ct = V.get(2); cL8, cL32, cL128, cLw, cLp = [V.get(2) for _ in range(5)]
        vAGR, vAGW, vLS, vAGL = V.grp(4)
        P.lam_base(g, pr, t[3], t[4], t[2]); P.cpow(g, ct, None, t[3], t[4])
        g(f"v_min_u32 {v(t[2])}, 39, {v(vL)}"); g(f"v_lshl_add_u32 {v(vAGR)}, {v(t[2])}, 3, s{sSCR}"); g(f"ds_write_b64 {v(vAGR)}, {v(ct,2)}")
        g(f"s_lshl3_add_u32 s{sT0}, s{sW}, {AGS}"); g(f"v_mul_u32_u24 {v(vLS)}, 56, {v(t[2])}"); g(f"v_add_u32 {v(vLS)}, s{sT0}, {v(vLS)}")
        cK = V.get(12)
        g(f"v_and_b32 {v(t[2])}, 7, {v(vN)}"); g(f"v_lshl_add_u32 {v(t[2])}, {v(t[2])}, 3, s{sSCR}")
        g(f"ds_read2_b64 {v(cK,4)}, {v(t[2])} offset0:0 offset1:8"); g(f"ds_read2_b64 {v(cK+4,4)}, {v(t[2])} offset0:16 offset1:24"); g(f"ds_read_b64 {v(cK+8,2)}, {v(t[2])} offset:256")
        g(f"v_lshrrev_b32 {v(t[1])}, 3, {v(vN)}"); g(f"v_lshl_add_u32 {v(vAGW)}, {v(t[1])}, 2, {v(t[2])}"); g(f"v_mul_u32_u24 {v(t[2])}, 320, {v(vG)}"); g(f"v_add_u32 {v(vAGW)}, {v(vAGW)}, {v(t[2])}")
        g(f"v_mov_b32 {v(ct)}, 0"); g(f"v_mov_b32 {v(ct+1)}, 0"); g(f"ds_write_b64 {v(vLS)}, {v(ct,2)}")
        P.cpow(g, cL8, "0x41000000", t[3], t[4]); P.cpow(g, cL32, "0x42000000", t[3], t[4]); P.cpow(g, cL128, "0x43000000", t[3], t[4])
        g(f"s_lshl_b32 s{sT0}, s{sW}, 5"); g(f"v_cvt_f32_u32 {v(t[2])}, s{sT0}"); P.cpow(g, cLw, v(t[2]), t[3], t[4])
        g(f"s_sub_u32 s{sT0}, 3, s{sW}"); g(f"s_lshl_b32 s{sT0}, s{sT0}, 9"); g(f"v_cvt_f32_u32 {v(t[2])}, s{sT0}"); P.cpow(g, cLp, v(t[2]), t[3], t[4])
        g(f"v_xor_b32 {v(t[1])}, 1, {v(t[1])}"); g(f"v_lshlrev_b32 {v(t[1])}, 31, {v(t[1])}")
        for i in range(5): g(f"v_xor_b32 {v(cK+2*i+1)}, {v(t[1])}, {v(cK+2*i+1)}")
        sK4, sK8, sK12, sZM, sES, sCST, sCLM, sH2, sMSK, sODD = [S.get() for _ in range(10)]; sAG = [S.get() for _ in range(4)]
        g(f"s_movk_i32 s{sK4}, 4096"); g(f"s_movk_i32 s{sK8}, 8192"); g(f"s_movk_i32 s{sK12}, 12288"); g(f"s_mov_b32 s{sH2}, 36864"); g(f"s_mov_b32 s{sMSK}, 0xffff0000"); g(f"s_and_b32 s{sODD}, s{sW}, 1")
        g(f"s_mov_b32 s{mT+1}, 0xff"); g(f"s_lshl_b32 s{sT0}, s{sJ}, 14"); g(f"s_add_u32 s{sT0}, s{sT0}, {AGG_OFF}"); g(f"v_add_u32 {v(vAGL)}, s{sT0}, {v(vL16)}"); g(f"v_cndmask_b32 {v(vAGL)}, {v(vOOB)}, {v(vAGL)}, s[{mT}:{mT+1}]")
        g(f"s_lshl_b32 s{sT0}, s{sC}, 10"); g(f"s_cmp_eq_u32 s{sW}, 3"); g(f"s_cselect_b32 s{sES}, s{sT0}, {OOB}")
        g(f"s_cmp_eq_u32 s{sC}, 15"); g(f"s_cselect_b32 s{sZM}, 0, -1")
        g(f"s_lshl2_add_u32 s{sT0}, s{sW}, s{sC}")
        for i in range(4):
            g(f"s_sub_u32 s{sAG[i]}, s{sT0}, {16-i}"); g(f"s_min_u32 s{sAG[i]}, s{sAG[i]}, 15"); g(f"s_lshl_b32 s{sAG[i]}, s{sAG[i]}, 10")
        g(f"s_mul_i32 s{sCST}, s{sW}, {9*4608}")
        sCL7, sCL8 = S.get(), S.get()
        g(f"s_mul_i32 s{sCLM}, s{sW}, 10240"); g(f"s_add_u32 s{sCLM}, s{sCLM}, 16384"); g(f"s_mul_i32 s{sCL7}, s{sW}, 5120"); g(f"s_add_u32 s{sCL7}, s{sCL7}, {WQ2}"); g(f"s_lshl_b32 s{sCL8}, s{sW}, 12")
        def cl_loc(k): return (0, (k-25)*1024) if k < 35 else (1, (k-35)*1024) if k < 40 else (2, (k-40)*1024)
        vCF, vCF4 = ct, ct+1
        P.cf_addr(g, sCG, vCF, vCF4)
        F = f
        def wkv_dma(it):
            return [f"s_mul_i32 s{sD}, s{sSL[it]}, 80", f"s_add_u32 m0, s{sWM}, {kv_lds(it)}",
                    f"buffer_load_dwordx4 {v(vWG)}, {SWS}, s{sD} offen sc1 lds", f"buffer_load_dwordx4 {v(vWG)}, {SWS}, s{sD} offen offset:1024 sc1 lds",
                    f"s_mov_b32 exec_hi, 0\nbuffer_load_dwordx4 {v(vWG)}, {SWS}, s{sD} offen offset:2048 sc1 lds\ns_mov_b32 exec_hi, -1"]
        def wq_dma(it): return [f"s_lshl_b32 s{sD}, s{sSL[it]}, 5", f"s_add_u32 m0, s{sWMq}, {q_lds(it)}", f"buffer_load_dwordx4 {v(vWGq)}, {SWS}, s{sD} offen sc1 lds"]
        fb = A.get(56)
        def ssm_reads(st):
            it, ka = st >> 1, st & 1; ring = it % NR; b = fb + (st & 1)*28
            L = [f"ds_read_b128 {a(b+20,4)}, {v(vFX1 if ka else vFX0)} offset:{R_X + ring*16384}", f"ds_read_b128 {a(b,4)}, {v(vFB1 if ka else vFB0)} offset:{ring*8192}",
                 f"ds_read_b128 {a(b+24,4)}, {v(vFX1 if ka else vFX0)} offset:{R_X + ring*16384 + 2048}"]
            L += [f"ds_read_b128 {a(b+4*i,4)}, {v(vFB1 if ka else vFB0)} offset:{ring*8192 + i*2048}" for i in range(1, 4)]
            L += [f"ds_read_b128 {a(b+16,4)}, {v(vT41 if ka else vT40)} offset:{it*512}"]
            return L
        g = G
        g(f"s_setprio {O.get('prioS', 1)}")
        g.wait(slab[0]); g.waitall(lg=True); g("s_barrier")
        rt = [g(x) for x in ssm_reads(0)][-1]
        dq = x2 + x3; wkv = {}; wq = {}; cur = []; gapn = 0
        PC_ST = 2*O.get("pc_b", 6) - 1; PI_ST = PC_ST - 2
        K1, K2 = O.get("k1", 3), O.get("k2", 6)
        m = Stream()
        for st in range(18):
            it = st >> 1
            if st & 1:
                if O.get("fine"): P.stamp(m, f"a{it+1}")
                m.wait(rt, slab[it+1] if it + 1 < 9 else wkv[K1-1])
                if O.get("fine"): P.stamp(m, f"w{it+1}")
                m("s_barrier")
                if it + NR < 9:
                    x, slab[it+NR] = items(slab_dma(it+NR)); dq += x
                if st == PI_ST: dq.insert(O.get("pipos", 3), [lambda g: P.poll_issue(g, vPC, 0)])
                if st == PC_ST: dq.append([lambda g: P.poll_check(g, vPC, 0)])
                rdy = [PC_ST]*3 + [11, 13, 13, 15, 15, 15]
                for k in range(9):
                    if k < KS_ and k not in wkv and st >= max(PC_ST, rdy[k]):
                        x, wkv[k] = items(wkv_dma(k)); dq += x
            else: m.wait(rt)
            rq = ssm_reads(st+1) if st < 17 else []
            b = fb + (st & 1)*28
            for i in range(5):
                for T in range(2):
                    m(f"{MF} {v(AS(T,i),4)}, {a(b+20+4*T,4)}, {a(b+4*i,4)}, {'0' if st == 0 else v(AS(T,i),4)}")
                    if rq: rt = m(rq.pop(0))
                    gapn += 1
                    if cur: cur.pop(0)(m)
                    elif dq and gapn >= (O.get("dgap", 3) if len(dq) <= 6 else O.get("dgap2", 3)):
                        cur = list(dq.pop(0)); cur.pop(0)(m); gapn = 0
            if st in (5, 11) and not O.get("fine"): P.stamp(m, f"ssm{st}")
        s0 = merge(m, F, gapc=O.get("gap1", 20), start=O.get("fst", 40)); print("S fill", len(F.flat()), "left", len(s0.left.flat()), "est", est(s0.b)[1], "dq left", len(dq))
        G.add(s0)
        for e in cur: e(g)
        DQL = dq
        for x in gs + pv_: V.rel(x)
        A.rel(fb)
        P.stamp(g, "ph1")
        emit_items(g, DQL)
        g(f"s_setprio {O.get('prioP1', 0)}")
        g = Stream(); X = g
        pp = V.get(12); oa = V.get(8); wa = V.get(4); vPW = V.get(2); pw3 = pp
        prev = [AS(0,i) for i in range(5)]
        for st in range(1, 8):
            T, k = st >> 2, st & 3
            cur = [pp + (st & 1)*5 + i for i in range(5)]
            for i in range(5): g(f"v_fma_f32 {v(cur[i])}, {v(cK+2*i)}, {v(prev[i])}, {v(AS(T,i)+k)}")
            for i in range(5): g(f"v_fmac_f32_dpp {v(cur[i])}, {v(prev[i])}, {v(cK+2*i+1)} {DPP}")
            prev = cur
            if st == O.get("ew1", 7): g.wait(wkv[KS_-1]); P.sig(g, E_W1)
            if st == O.get("fcst", 5): P.poll_issue(g, vPG, 128, t[7])
        if O.get("fineh"): P.stamp(g, "p1")
        g(f"ds_write2_b32 {v(vAGW)}, {v(prev[0])}, {v(prev[1])} offset0:0 offset1:16"); g(f"ds_write2_b32 {v(vAGW)}, {v(prev[2])}, {v(prev[3])} offset0:32 offset1:48"); g(f"ds_write_b32 {v(vAGW)}, {v(prev[4])} offset:256")
        g(f"ds_read2_b64 {v(oa,4)}, {v(vAGR)} offset0:0 offset1:40"); g(f"ds_read2_b64 {v(oa+4,4)}, {v(vAGR)} offset0:80 offset1:120")
        cmad(g, wa, oa, cL8, oa+2); cmad(g, wa+2, wa, cL8, oa+4); cmad(g, wa, wa+2, cL8, oa+6)
        g(f"ds_write_b64 {v(vLS)}, {v(wa,2)} offset:24"); P.sig(g, E_WA)
        G.add(X); g = G
        if O.get("fineh"): P.stamp(g, "wa")
        P.lwait(g, 1, E_WA)
        g(f"ds_read2_b64 {v(pw3,4)}, {v(vLS)} offset0:0 offset1:1"); g(f"ds_read_b64 {v(pw3+4,2)}, {v(vLS)} offset:16")
        g(f"v_mov_b32 {v(wa+2)}, {v(vTAG)}"); g(f"v_mov_b32 {v(wa+3)}, {v(vTAG)}"); g(f"v_add_u32 {v(t[2])}, s{sES}, {v(vAGL)}")
        cmad(g, pw3+2, pw3, cL32, pw3+2); cmad(g, vPW, pw3+2, cL32, pw3+4); cmad(g, wa, vPW, cL32, wa)
        g(f"v_and_b32 {v(wa)}, s{sZM}, {v(wa)}"); g(f"v_and_b32 {v(wa+1)}, s{sZM}, {v(wa+1)}")
        g(f"buffer_store_dwordx4 {v(wa,4)}, {v(t[2])}, {SWS}, 0 offen sc1")
        g("s_setprio 0")
        P.stamp(g, "epub")
        P.poll_check(g, vPG, 128, t[7]); P.sig(g, E_FC)
        if O.get("fineh"): P.stamp(g, "fc")
        NRG = 25; cfa = A.get(4*NRG+4); hb = A.get(12); hb2 = A.get(12)
        clist = [(p, m) for p in range(9) for m in range(5)]; BF = {}
        L = []; L2 = []; NCL = 19
        def c_ad(m_): return f"{v(vCF)}, {SWS}, s{sCST} offen offset:{1024*m_} sc1" if m_ < 4 else f"{v(vCF4)}, {SWS}, s{sCST} offen sc1"
        for k, (p, m_) in enumerate(clist[:NRG+NCL]):
            dst = L if k < NRG else L2
            if m_ == 0 and p > 0: dst.append(f"s_add_u32 s{sCST}, s{sCST}, 4608")
            if k < NRG:
                BF[(p, m_)] = a(cfa + 4*k, 4); dst.append(f"buffer_load_dwordx4 {BF[(p, m_)]}, {c_ad(m_)}")
            else:
                if m_ == 0 or m_ == 4 or k == NRG: dst.append(f"s_add_u32 m0, s{(sCLM, sCL7, sCL8)[cl_loc(k)[0]]}, {cl_loc(k)[1]}")
                dst.append(f"buffer_load_dwordx4 {c_ad(m_)} lds")
        BF[(8, 4)] = a(cfa + 4*NRG, 4)
        L += [f"s_add_u32 s{sD}, s{sCST}, {4*4608}", f"buffer_load_dwordx4 {BF[(8, 4)]}, {v(vCF4)}, {SWS}, s{sD} offen sc1"]
        CQ, _ = items(L); CQ2, cltok = items(L2)
        g = Stream(); X = g
        for k in range(4): g(f"v_mov_b32 {v(pw3+k)}, 0")
        g(f"v_lshlrev_b32 {v(t[2])}, 4, v0"); g(f"v_add_u32 {v(t[2])}, {KVA}, {v(t[2])}")
        g(f"ds_write_b128 {v(t[2])}, {v(pw3,4)}"); g(f"ds_write_b128 {v(t[2])}, {v(pw3,4)} offset:4096")
        V.rel(pp); V.rel(wa, 4); V.rel(cL32, 2)
        vHTW, vHTR, vHTH, vHS = V.grp(4); vHSH, vKG, vKW = vWG, vWGq, vPG; sKM = S.get(2)
        g(f"v_and_b32 {v(t[2])}, 1, {v(vG)}")
        g(f"s_mul_i32 s{sT0}, s{sW}, 6400"); g(f"s_add_u32 s{sT0}, s{sT0}, {WB}")
        g(f"v_mul_u32_u24 {v(vHTW)}, 80, {v(vN)}"); g(f"v_lshl_add_u32 {v(vHTW)}, {v(vG)}, 4, {v(vHTW)}"); g(f"v_add_u32 {v(vHTW)}, s{sT0}, {v(vHTW)}")
        g(f"v_mul_u32_u24 {v(t[3])}, 80, {v(vR2)}"); g(f"v_lshl_add_u32 {v(t[3])}, {v(vN3)}, 4, {v(t[3])}"); g(f"v_add_u32 {v(t[3])}, s{sT0}, {v(t[3])}")
        g(f"v_mul_u32_u24 {v(vHTR)}, 1280, {v(vG)}"); g(f"v_add_u32 {v(vHTR)}, {v(vHTR)}, {v(t[3])}"); g(f"v_lshl_add_u32 {v(vHTH)}, {v(t[2])}, 3, {v(t[3])}")
        g(f"s_mul_i32 s{sT0}, s{sU}, 73728"); g(f"s_mul_i32 s{sT1}, s{sJ}, 2304"); g(f"s_add_u32 s{sT0}, s{sT0}, s{sT1}"); g(f"s_add_u32 s{sT0}, s{sT0}, {AH_OFF}")
        g(f"v_add_u32 {v(vHS)}, s{sT0}, {v(vL16)}"); g(f"v_lshl_add_u32 {v(t[5])}, {v(vN)}, 4, s{sT0}"); g(f"v_mad_u32_u24 {v(vHSH)}, {v(t[2])}, s{sH2}, {v(t[5])}")
        g(f"s_lshl_b32 s{sT1}, s{sJ}, 16"); g(f"s_add_u32 s{sT1}, s{sT1}, {KVP_OFF}"); g(f"s_lshl_b32 s{sT0}, s{sW}, 14"); g(f"s_add_u32 s{sT0}, s{sT0}, s{sT1}"); g(f"v_add_u32 {v(vKG)}, s{sT0}, {v(vL16)}")
        g(f"v_bfe_u32 {v(t[3])}, v0, 4, 3"); g(f"v_cmp_le_u32 s[{sKM}:{sKM+1}], 3, {v(t[3])}"); g(f"v_mul_u32_u24 {v(t[5])}, 24, {v(t[3])}"); g(f"v_subrev_u32 {v(t[6])}, 60, {v(t[5])}"); g(f"v_cndmask_b32 {v(t[5])}, {v(t[5])}, {v(t[6])}, s[{sKM}:{sKM+1}]")
        g(f"s_movk_i32 s{sT1}, {KVAP}"); g(f"v_mad_u32_u24 {v(t[5])}, {v(vN)}, s{sT1}, {v(t[5])}"); g(f"v_cmp_le_u32 s[{sKM}:{sKM+1}], 6, {v(t[3])}")
        g(f"v_mul_u32_u24 {v(t[6])}, 12, {v(t[2])}"); g(f"v_mad_u32_u24 {v(t[6])}, {v(vR2)}, 24, {v(t[6])}"); g(f"v_mad_u32_u24 {v(t[6])}, {v(vN3)}, s{sT1}, {v(t[6])}"); g(f"v_add_u32 {v(t[6])}, {16*KVAP}, {v(t[6])}")
        g(f"s_lshr_b32 s{sT0}, s{sW}, 1"); g(f"s_mul_i32 s{sT0}, s{sT0}, {19*KVAP+80}"); g(f"s_add_u32 s{sT0}, s{sT0}, {KVA}")
        g(f"v_cndmask_b32 {v(t[5])}, {v(t[5])}, {v(t[6])}, s[{sKM}:{sKM+1}]"); g(f"v_add_u32 {v(vKW)}, s{sT0}, {v(t[5])}")
        g(f"s_mov_b32 s{sKM}, -1"); g(f"s_cmp_eq_u32 s{sODD}, 0"); g(f"s_cselect_b32 s{sKM+1}, -1, 0x07770777")
        G.add(pace(X, CQ, O.get("vint2", 50), flush=False)); g = G
        emit_items(g, CQ, len(CQ) - (NRG + 1 - O.get("nc1", 13)))
        eg = V.get(16)
        def agg_loads(g, raw=False):
            for i in range(4): g(f"buffer_load_dwordx4 {v(eg+4*i,4)}, {v(vAGL)}, {SWS}, s{sAG[i]} offen sc1", raw=raw)
        def agg_check(g, raw=False):
            g(f"v_xor_b32 {v(t[0])}, {v(eg+2)}, {v(vTAG)}", raw=raw)
            for i in range(1, 4): g(f"v_bitop3_b32 {v(t[0])}, {v(t[0])}, {v(eg+4*i+2)}, {v(vTAG)} bitop3:0xf6", raw=raw)
        agg_loads(g)
        P.stamp(g, "aggld")
        emit_items(g, CQ, O.get("nc2", 12))
        g(f"s_setprio {O.get('prioP2', 3)}")
        agg_check(g)
        T_ = P.tail; sSP = P.sSP
        g.begin(); g(f"v_cmp_ne_u32 vcc, 0, {v(t[0])}"); g("s_and_b32 vcc_hi, vcc_hi, 0xff"); g("s_cmp_lg_u64 vcc, 0"); g("s_cbranch_scc1 L_spin_ag"); g("L_back_ag:"); g.end()
        T_(f"L_spin_ag:\ns_mov_b32 s{sSP}, 0\nL_loop_ag:", raw=True); agg_loads(T_, True); T_(f"s_waitcnt vmcnt(0)\ns_add_u32 s{sSP}, s{sSP}, 1", raw=True); agg_check(T_, True)
        T_(f"v_cmp_ne_u32 vcc, 0, {v(t[0])}\ns_cmp_gt_u32 s{sSP}, {SPIN}\ns_cbranch_scc1 L_back_ag\ns_and_b32 vcc_hi, vcc_hi, 0xff\ns_cmp_lg_u64 vcc, 0\ns_cbranch_scc1 L_loop_ag\ns_branch L_back_ag", raw=True)
        for i in range(1, 4): cmad(g, eg+4*i, eg+4*i-4, cL128, eg+4*i)
        g(f"v_mul_f32 {v(eg)}, {v(eg+12)}, {v(cLp)}"); g(f"v_mul_f32 {v(eg+1)}, {v(eg+13)}, {v(cLp)}")
        g(f"v_fma_f32 {v(eg)}, -{v(eg+13)}, {v(cLp+1)}, {v(eg)}"); g(f"v_fmac_f32 {v(eg+1)}, {v(eg+12)}, {v(cLp+1)}")
        g(f"ds_write_b64 {v(vLS)}, {v(eg,2)} offset:{ACP-AGS}"); P.sig(g, E_CP)
        g(f"s_lshl_b32 s{sT0}, s{sW}, 3"); g(f"s_sub_u32 s{sT0}, {ACP-AGS}, s{sT0}"); g(f"v_add_u32 {v(vLS)}, s{sT0}, {v(vLS)}")
        P.lwait(g, 1, E_CP)
        P.stamp(g, "carry")
        g = Stream(); X = g
        g(f"ds_read2_b64 {v(eg+4,4)}, {v(vLS)} offset0:0 offset1:1"); g(f"ds_read2_b64 {v(eg+8,4)}, {v(vLS)} offset0:2 offset1:3")
        for k in range(2):
            g(f"v_add_f32 {v(eg+4+k)}, {v(eg+4+k)}, {v(eg+6+k)}"); g(f"v_add_f32 {v(eg+8+k)}, {v(eg+8+k)}, {v(eg+10+k)}")
        for k in range(2): g(f"v_add_f32 {v(eg+4+k)}, {v(eg+4+k)}, {v(eg+8+k)}")
        hs = eg + 8
        cmad(g, hs, eg+4, cLw, vPW); cmad(g, hs+2, hs, cL8, oa); g(f"ds_write2_b64 {v(vAGR)}, {v(hs,2)}, {v(hs+2,2)} offset0:0 offset1:40")
        cmad(g, hs+4, hs+2, cL8, oa+2); cmad(g, hs+6, hs+4, cL8, oa+4); g(f"ds_write2_b64 {v(vAGR)}, {v(hs+4,2)}, {v(hs+6,2)} offset0:80 offset1:120")
        hin = eg
        g(f"ds_read2_b32 {v(hin,2)}, {v(vAGW)} offset0:0 offset1:16"); g(f"ds_read2_b32 {v(hin+2,2)}, {v(vAGW)} offset0:32 offset1:48"); g(f"ds_read_b32 {v(hin+4)}, {v(vAGW)} offset:256")
        prev = [hin+i for i in range(5)]
        for st in range(8):
            T, k = st >> 2, st & 3
            for i in range(5): g(f"v_fmac_f32 {v(AS(T,i)+k)}, {v(cK+2*i)}, {v(prev[i])}")
            for i in range(5): g(f"v_fmac_f32_dpp {v(AS(T,i)+k)}, {v(prev[i])}, {v(cK+2*i+1)} {DPP}")
            prev = [AS(T,i)+k for i in range(5)]
        for i in range(5):
            d = AS(0,i)
            g(f"v_cvt_pk_bf16_f32 {v(d)}, {v(d)}, {v(d+1)}"); g(f"v_cvt_pk_bf16_f32 {v(d+1)}, {v(d+2)}, {v(d+3)}")
            g(f"v_cvt_pk_bf16_f32 {v(d+2)}, {v(AS(1,i))}, {v(AS(1,i)+1)}"); g(f"v_cvt_pk_bf16_f32 {v(d+3)}, {v(AS(1,i)+2)}, {v(AS(1,i)+3)}")
        G.add(pace(X, CQ, O.get("vint3", 100))); g = G
        g("s_setprio 0")
        P.stamp(g, "pass2")
        P.lwait(g, 0, A_PK, sleep=1)
        for i in range(5): g(f"ds_write_b128 {v(vHTW)}, {v(AS(0,i),4)} offset:{1280*i}")
        V.rel(eg); V.rel(cK); V.rel(oa); V.rel(accS)
        for x in (cL8, cL128, cLw, cLp, vPW): V.rel(x, 2)
        for x in (vAGR, vAGW, vLS, vAGL): V.rel(x)
        hp = V.get(20)
        for T in range(2):
            for im in range(2):
                for hf in range(2): g(f"ds_read_b64_tr_b16 {v(hp+(T*2+im)*4+2*hf,2)}, {v(vHTR)} offset:{(8*im+4*hf)*80 + 8*T}")
        for im in range(2): g(f"ds_read_b64_tr_b16 {v(hp+16+2*im,2)}, {v(vHTH)} offset:{(64+8*im)*80}")
        def h_stores():
            for T in range(2):
                for im in range(2): g(f"buffer_store_dwordx4 {v(hp+(T*2+im)*4,4)}, {v(vHS)}, {SWS}, {'s%d' % sH2 if T else '0'} offen offset:{1024*im} sc1")
            g.begin(); g("s_mov_b32 exec_hi, 0"); x = g(f"buffer_store_dwordx4 {v(hp+16,4)}, {v(vHSH)}, {SWS}, 0 offen offset:2048 sc1"); g("s_mov_b32 exec_hi, -1"); g.end()
            return x
        hst = h_stores()
        P.stamp(g, "hpub")
        emit_items(g, CQ2, O.get("nc3", 10))
        if O.get("hf1", 1): g.wait(hst); P.flag_last(g, 256, 0); P.stamp(g, "hflag")
        P.lwait(g, 0, O.get("kvev", A_KV), sleep=1)
        P.stamp(g, "kvld")
        kg = V.get(64); ka_ = V.get(8)
        KVL = [f"buffer_load_dwordx4 {v(kg+4*u,4)}, {v(vKG)}, {SWS}, {['0', 's%d' % sK4, 's%d' % sK8, 's%d' % sK12][u >> 2]} offen offset:{1024*(u&3)} sc1" for u in range(16)]
        for x in KVL: g(x)
        if not O.get("hf1", 1): g.wait(hst); P.flag_last(g, 256, 0); P.stamp(g, "hflag")
        emit_items(g, CQ2, 10 - O.get("nc3", 10))
        P.poll_issue(g, vPR, 256, t[2])
        sLO, sHI = S.get(), S.get(); g(f"s_movk_i32 s{sLO}, 0x3f80"); g(f"s_mov_b32 s{sHI}, 0x3f800000")
        g(f"s_setprio {O.get('prioR', 3)}")
        g(f"L_redo_kv:")
        for k in range(3): g(f"v_lshlrev_b32 {v(ka_+2*k)}, 16, {v(kg+k)}"); g(f"v_and_b32 {v(ka_+2*k+1)}, s{sMSK}, {v(kg+k)}")
        g(f"v_xor_b32 {v(t[0])}, {v(kg+3)}, {v(vTAG)}")
        for u in range(1, 16):
            for k in range(3):
                g(f"v_dot2c_f32_bf16 {v(ka_+2*k)}, s{sLO}, {v(kg+4*u+k)}"); g(f"v_dot2c_f32_bf16 {v(ka_+2*k+1)}, s{sHI}, {v(kg+4*u+k)}")
            g(f"v_bitop3_b32 {v(t[0])}, {v(t[0])}, {v(kg+4*u+3)}, {v(vTAG)} bitop3:0xf6")
        g.begin(); g(f"v_cmp_ne_u32 vcc, 0, {v(t[0])}"); g("s_cbranch_vccnz L_spin_kv"); g("L_back_kv:"); g.end()
        T_(f"L_spin_kv:\ns_mov_b32 s{sSP}, 0\nL_loop_kv:\ns_sleep 8\n" + "\n".join(KVL) + f"\ns_waitcnt vmcnt(0)\ns_add_u32 s{sSP}, s{sSP}, 1\nv_xor_b32 {v(t[0])}, {v(kg+3)}, {v(vTAG)}", raw=True)
        for u in range(1, 16): T_(f"v_bitop3_b32 {v(t[0])}, {v(t[0])}, {v(kg+4*u+3)}, {v(vTAG)} bitop3:0xf6", raw=True)
        T_(f"v_cmp_ne_u32 vcc, 0, {v(t[0])}\ns_cmp_gt_u32 s{sSP}, {SPIN}\ns_cbranch_scc1 L_back_kv\ns_cbranch_vccnz L_loop_kv\ns_branch L_redo_kv", raw=True)
        for k in range(3): g(f"v_cvt_pk_bf16_f32 {v(ka_+k)}, {v(ka_+2*k)}, {v(ka_+2*k+1)}")
        g.begin(); g(f"s_mov_b64 exec, s[{sKM}:{sKM+1}]")
        g(f"ds_write2_b32 {v(vKW)}, {v(ka_)}, {v(ka_+1)} offset0:0 offset1:1"); g(f"ds_write_b32 {v(vKW)}, {v(ka_+2)} offset:8")
        g("s_mov_b64 exec, -1"); g.end()
        P.sig(g, E_KVA)
        g("s_setprio 0")
        V.rel(kg); V.rel(ka_); V.rel(hp)
        P.stamp(g, "kvred")
        vAH = [vHTW, vHTR, vHTH, vHS]; sPB = S.get()
        g(f"s_lshl1_add_u32 s{sPB}, s{sC}, s{sTH}"); g(f"s_mul_i32 s{sT1}, s{sW}, 9216"); g(f"s_add_u32 s{sT1}, s{sT1}, {AH_OFF}")
        g(f"s_mul_i32 s{sT0}, s{sPB}, 147456"); g(f"s_add_u32 s{sT0}, s{sT0}, s{sT1}"); g(f"v_add_u32 {v(vAH[0])}, s{sT0}, {v(vL16)}")
        for k in range(1, 4): g(f"v_add_u32 {v(vAH[k])}, s{sH2}, {v(vAH[k-1])}")
        fx = [vWG, vWGq]
        r0, qd = vN3, vR2
        g(f"v_mul_u32_u24 {v(r0)}, 3641, v0"); g(f"v_lshrrev_b32 {v(r0)}, 16, {v(r0)}"); g(f"v_mul_u32_u24 {v(qd)}, 18, {v(r0)}"); g(f"v_sub_u32 {v(qd)}, v0, {v(qd)}")
        g(f"s_mul_i32 s{sT1}, s{sCG}, 144"); g(f"v_lshl_add_u32 {v(t[7])}, {v(qd)}, 3, s{sT1}"); g(f"v_mov_b32 {v(vPG)}, {v(t[7])}")
        g(f"s_movk_i32 s{sT1}, 252"); g(f"v_cmp_gt_u32 s[{sKM}:{sKM+1}], s{sT1}, v0"); g(f"s_movk_i32 s{sT1}, 144"); g(f"v_cmp_gt_u32 s[{mT}:{mT+1}], s{sT1}, v0")
        g(f"v_mul_u32_u24 {v(t[6])}, 1152, {v(r0)}"); g(f"v_add_u32 {v(t[6])}, {v(t[6])}, {v(t[7])}")
        g(f"v_cndmask_b32 {v(fx[0])}, {v(vOOB)}, {v(t[6])}, s[{sKM}:{sKM+1}]"); g(f"v_cndmask_b32 {v(fx[1])}, {v(vOOB)}, {v(t[6])}, s[{mT}:{mT+1}]")
        sXR = sSL[:5]
        g(f"s_mul_i32 s{sXR[0]}, s{sPB}, {64*1152}")
        for rd in range(5):
            if rd: g(f"s_add_u32 s{sXR[rd]}, s{sXR[0]}, {rd*14*1152}")
        SKL = [f"buffer_load_dwordx2 {a(hb+2*rd,2)}, {v(fx[rd == 4])}, {SX}, s{sXR[rd]} offen\ns_lshl_b32 s{sXR[rd]}, s{sXR[rd]}, 1" for rd in range(5)] + [f"global_load_dwordx2 {a(hb+10,2)}, {v(vPG)}, s[54:55]"]
        P.poll_check(g, vPR, 256, t[2], sleep=O.get("fhsleep", 6))
        g(f"s_setprio {O.get('prioH', 1)}")
        P.stamp(g, "fh")
        acc = V.get(80); AC = lambda lt, m: acc + (lt*5+m)*4
        nfree = len([x for x in V.free if x % 4 == 0 and all(x+k in V.free for k in range(4))])
        hbv = V.get(4*nfree); print("h ring quads", nfree)
        units = [(p, lt) for p in range(9) for lt in range(4)]
        hq = [a(hb + 4*k, 4) for k in range(3)]
        free = hq + [a(hb2 + 4*k, 4) for k in range(3)] + [v(hbv + 4*k, 4) for k in range(nfree)]; skq = 0
        vCLR = [t[7], t[5], t[4]]
        for k, x in enumerate((sCLM, sCL7, sCL8)): g(f"v_add_u32 {v(vCLR[k])}, s{x}, {v(vL16)}")
        HBq = {}; nxt = 0; todo = list(range(NRG, 44)); MAXA = O.get("hahead", 12)
        def h_issue():
            nonlocal nxt
            p, lt = units[nxt]; HBq[nxt] = free.pop(0)
            g(f"buffer_load_dwordx4 {HBq[nxt]}, {v(vAH[lt])}, {SWS}, {['0', 's%d' % sK4, 's%d' % sK8][p >> 2]} offen offset:{1024*(p&3)} sc1"); nxt += 1
        def c_issue():
            k = todo.pop(0); p, m_ = clist[k]; BF[(p, m_)] = free.pop(0)
            if k < NRG + NCL: g.wait(cltok if k >= 35 else None); g(f"ds_read_b128 {BF[(p, m_)]}, {v(vCLR[cl_loc(k)[0]])} offset:{cl_loc(k)[1]}")
            else:
                if m_ == 0: g(f"s_add_u32 s{sCST}, s{sCST}, 4608")
                g(f"buffer_load_dwordx4 {BF[(p, m_)]}, {c_ad(m_)}")
        while free: h_issue()
        P.lwait(g, 0, A_GT, sleep=1)
        vPW_ = t[6]
        g(f"v_mul_u32_u24 {v(vPW_)}, {PARTP}, {v(vTOK)}"); g(f"v_lshl_add_u32 {v(vPW_)}, {v(vG)}, 4, {v(vPW_)}"); g(f"s_mul_i32 s{sT1}, s{sW}, {64*PARTP}"); g(f"v_add_u32 {v(vPW_)}, s{sT1}, {v(vPW_)}")
        wl = []
        for idx, (p, lt) in enumerate(units):
            for mm_ in range(5):
                g(f"{MF} {v(AC(lt,mm_),4)}, {BF[(p,mm_)]}, {HBq[idx]}, {'0' if p == 0 else v(AC(lt,mm_),4)}")
                if mm_ == 0 and idx >= 1:
                    if idx > 12 and HBq[idx-1] in hq: skq += 1
                    else: free.append(HBq[idx-1])
                if idx > 12:
                    for x in [y for y in free if y in hq]: free.remove(x); skq += 1
                if wl and mm_ >= 1:
                    g(wl.pop(0))
                    if mm_ == 4: g(wl.pop(0))
                    continue
                if skq == 3 and SKL and nxt == len(units) and not todo and mm_ % 2 == 0:
                    g(SKL.pop(0)); continue
                if mm_ == 0 and lt == 0 and p >= 1: free.extend(BF[(p-1, k)] for k in range(5))
                if CQ2 and mm_ == 3 and idx >= O.get("clst", 0):
                    emit_items(g, CQ2, 1); continue
                if free:
                    late = todo and ((todo[0] >= NRG + NCL and clist[todo[0]][0] <= p + 3) or clist[todo[0]][0] <= p + 1 or (todo[0] < NRG + NCL and clist[todo[0]][0] <= p + 2))
                    if late: c_issue()
                    elif nxt < len(units) and nxt - idx < MAXA: h_issue()
            if p == 7 and lt == 0:
                assert not todo or todo[0] >= NRG + NCL
                g.waitall(lg=True); P.sig(g, E_CLD)
            if lt == 3 and p < 8 and O.get("fineh"): P.stamp(g, f"h{p}")
            if p == 7 and lt == 2: P.lw_issue(g, 1)
            if p == 8:
                if lt == 0: P.lw_check(g, 1, E_CLD)
                assert not wl
                wl = [f"ds_write_b128 {v(vPW_)}, {v(AC(lt,mm_),4)} offset:{((lt>>1)*32 + (lt&1)*4)*PARTP + 64*mm_}" for mm_ in range(5)]
                wl[4] = "s_mov_b32 exec_hi, 0\n" + wl[4] + "\ns_mov_b32 exec_hi, -1"
        for x in wl: g(x)
        P.sig(g, E_SP)
        assert not SKL
        P.stamp(g, "hpart")
        g(f"s_lshl_b32 s{sT0}, s{sTH}, 8"); g(f"s_add_u32 s{sT0}, s{sT0}, {GT}")
        fa = [vN, vG]
        g(f"v_mul_u32_u24 {v(fa[0])}, {PARTP}, {v(r0)}"); g(f"v_lshl_add_u32 {v(fa[0])}, {v(qd)}, 4, {v(fa[0])}"); g(f"v_add_u32 {v(fa[1])}, {128*PARTP}, {v(fa[0])}")
        g(f"v_lshlrev_b32 {v(fx[0])}, 1, {v(fx[0])}"); g(f"v_lshlrev_b32 {v(fx[1])}, 1, {v(fx[1])}")
        g(f"v_lshl_add_u32 {v(t[7])}, {v(r0)}, 2, s{sT0}")
        gg = t[2:7]
        for rd in range(5): g(f"ds_read_b32 {v(gg[rd])}, {v(t[7])} offset:{56*rd}")
        sm = acc + 60; fin = acc
        dd = acc + 48; xs = acc + 52
        for k in range(2): g(f"v_accvgpr_read_b32 {v(xs)}, {a(hb+10+k)}"); g(f"v_lshlrev_b32 {v(dd+2*k)}, 16, {v(xs)}"); g(f"v_and_b32 {v(dd+2*k+1)}, s{sMSK}, {v(xs)}")
        for k in range(4): g(f"v_mul_f32 {v(dd+k)}, 0.5, {v(dd+k)}")
        for rd in range(5): g(f"v_add_f32 {v(gg[rd])}, {v(gg[rd])}, {v(gg[rd])}")
        for rd in range(5):
            for k in range(2):
                g(f"v_accvgpr_read_b32 {v(xs)}, {a(hb+2*rd+k)}"); g(f"v_lshlrev_b32 {v(sm+4*rd+2*k)}, 16, {v(xs)}"); g(f"v_and_b32 {v(sm+4*rd+2*k+1)}, s{sMSK}, {v(xs)}")
            for k in range(4): g(f"v_mul_f32 {v(sm+4*rd+k)}, {v(sm+4*rd+k)}, {v(dd+k)}")
        def reduce_all(g, pk, store):
            def rd_issue(rd):
                for w in range(4): g(f"ds_read_b128 {v(fin+((rd%3)*4+w)*4,4)}, {v(fa[w>>1])} offset:{(w&1)*64*PARTP + rd*14*PARTP}")
            for rd in range(3): rd_issue(rd)
            for rd in range(5):
                b = fin + (rd % 3)*16
                if pk:
                    for k in range(2):
                        g(f"v_pk_add_f32 {v(sm+4*rd+2*k,2)}, {v(sm+4*rd+2*k,2)}, {v(b+2*k,2)}"); g(f"v_pk_add_f32 {v(b+4+2*k,2)}, {v(b+4+2*k,2)}, {v(b+8+2*k,2)}")
                    for k in range(2):
                        g(f"v_pk_add_f32 {v(sm+4*rd+2*k,2)}, {v(sm+4*rd+2*k,2)}, {v(b+12+2*k,2)}"); g(f"v_pk_add_f32 {v(sm+4*rd+2*k,2)}, {v(sm+4*rd+2*k,2)}, {v(b+4+2*k,2)}")
                else:
                    for w in range(4):
                        for k in range(4): g(f"v_add_f32 {v(sm+4*rd+k)}, {v(sm+4*rd+k)}, {v(b+4*w+k)}")
                    for k in range(4): g(f"v_mul_f32 {v(sm+4*rd+k)}, {v(sm+4*rd+k)}, {v(gg[rd])}")
                if rd + 3 < 5: rd_issue(rd+3)
                if store: g(f"buffer_store_dwordx4 {v(sm+4*rd,4)}, {v(fx[rd == 4])}, {SOUT}, s{sXR[rd]} offen {O.get('outmod', '')}")
        P.lwait(g, 1, E_SP)
        reduce_all(g, False, False)
        P.stamp(g, "spre")
        g(f"s_or_b32 s{sT0}, s{sU}, s{sJ}"); g(f"s_cmp_eq_u32 s{sT0}, 0"); g(f"s_cselect_b32 s{sT0}, 0, {OOB}"); g(f"v_mov_b32 {v(t[0])}, s{sT0}")
        for k in range(2): g(f"v_add_u32 {v(fa[k])}, {PA_OFF}, {v(fa[k])}")
        g("s_barrier")
        P.stamp(g, "fbar")
        reduce_all(g, True, True)
        g(f"buffer_store_dword {v(vTAG)}, {v(t[0])}, {SWS}, 0 offen sc1")
        P.finish(g, 4)
        return G

    def build(self):
        ga = self.pathA(); gs = self.pathS()
        PA, PS = self.PA, self.PS
        assert PA.sW == PS.sW
        pre = f"    s_cmp_ge_u32 s2, 256\n    s_cbranch_scc1 L_end\n" + "".join(f"    s_load_dwordx{n} s[{d}:{d+n-1}], s[0:1], {o}\n" for n, d, o in ((8,92,80),(2,4,0),(8,84,24),(2,28,128),(4,48,8),(4,52,56),(2,44,112))) + f"    s_getpc_b64 s[58:59]\n    v_readfirstlane_b32 s{PA.sW}, v0\n    s_nop 0\n    s_cmp_ge_u32 s{PA.sW}, 256\n    s_cbranch_scc1 L_S\n"
        dr = self.opt.get("drop")
        pd = {f"s{x}" for x in [PA.sW, 58, 59, 4, 5, 28, 29, 44, 45] + list(range(48, 56)) + list(range(84, 100))}
        ta = finalize(ga, drop=dr, pre=pd); tsx = finalize(gs, drop=dr, pre=pd)
        ia = ta.index("    ; #sh0"); isx = tsx.index("    ; #sh0")
        body = pre + ta[:ia] + "    s_branch L_A2\n.p2align 3\nL_S:\n" + tsx[:isx] + "    s_branch L_S2\n.p2align 6\nL_A2:\n" + ta[ia:] + ".p2align 6\nL_S2:\n" + tsx[isx:] + "L_end:\n"
        kn = NAME + "_kernel"
        txt = f"; @launch grid=(256,1,1) block=(512,1,1) lds={LDS_TOTAL}\n.amdgcn_target \"amdgcn-amd-amdhsa--gfx950\"\n.text\n.globl {kn}\n.p2align 8\n.type {kn},@function\n{kn}:\n"
        txt += body + "    s_endpgm\n.fill 8192, 4, 0xbf810000\n"
        txt += f""".section .rodata,"a"
.p2align 6
.amdhsa_kernel {kn}
  .amdhsa_next_free_vgpr 256
  .amdhsa_next_free_sgpr 102
  .amdhsa_accum_offset {NV}
  .amdhsa_group_segment_fixed_size 0
  .amdhsa_kernarg_size 136
  .amdhsa_user_sgpr_count 2
  .amdhsa_user_sgpr_kernarg_segment_ptr 1
  .amdhsa_system_sgpr_workgroup_id_x 1
  .amdhsa_float_denorm_mode_32 3
.end_amdhsa_kernel
"""
        return txt

def emit(name, **kw):
    k = K(stamps=True, **kw); t = k.build(); open(f"dev/{name}_st.s", "w").write(t)
    open(f"dev/{name}_st.names", "w").write(" ".join(k.PA.names) + "\n" + " ".join(k.PS.names))
    print("min free A: v", k.PA.V.minfree, "s", k.PA.S.minfree, " S: v", k.PS.V.minfree, "a", k.PS.A.minfree, "s", k.PS.S.minfree)
    k = K(**kw); open(f"dev/{name}.s", "w").write(k.build())
if __name__ == "__main__":
    emit("v11")
```

```python
import re
REG_RE = re.compile(r'\b([vas])\[(\d+):(\d+)\]|\b([vas])(\d+)\b|\b(vcc|exec|m0|scc)\b')
def regs_of(op):
    out = set()
    for m in REG_RE.finditer(op):
        if m.group(1):
            for i in range(int(m.group(2)), int(m.group(3)) + 1): out.add(m.group(1) + str(i))
        elif m.group(4): out.add(m.group(4) + m.group(5))
        else: out.add(m.group(6))
    return out
TRANS = ("v_exp_f32", "v_log_f32", "v_rcp_f32", "v_rsq_f32", "v_sqrt_f32", "v_sin_f32", "v_cos_f32")
class I:
    __slots__ = ("t", "k", "mn", "rd", "wr", "tok", "srcc", "srcab", "dpp", "raw", "wide")
    def __init__(self, t, k=None, tok=None, raw=False):
        self.t = t; self.tok = tok; self.raw = raw
        self.rd = set(); self.wr = set(); self.srcc = set(); self.srcab = set(); self.dpp = False; self.wide = set()
        if k is not None:
            self.k = k; self.mn = k; return
        body = t.split(";")[0].strip()
        sp = body.split(None, 1)
        mn = sp[0]; self.mn = mn
        rest = sp[1] if len(sp) > 1 else ""
        ops = []; depth = 0; cur = ""
        for ch in rest:
            if ch in "[(": depth += 1
            if ch in "])": depth -= 1
            if ch == "," and depth == 0: ops.append(cur.strip()); cur = ""
            else: cur += ch
        if cur.strip(): ops.append(cur.strip())
        mods = ""
        if ops:
            l = ops[-1].split(None, 1)
            if len(l) > 1: ops[-1] = l[0]; mods = l[1]
        R = [regs_of(o) for o in ops]
        if mn.endswith(":") or mn.startswith("."):
            self.k = "label"
        elif mn.startswith("v_mfma"):
            self.k = "mfma"; self.wr = R[0]; self.srcab = R[1] | R[2]; self.srcc = R[3]; self.rd = self.srcab | self.srcc
        elif mn.startswith("v_"):
            self.k = "valu"; self.wr = set(R[0])
            for r in R[1:]: self.rd |= r
            if mn.startswith(("v_fmac", "v_pk_fmac", "v_dot2c", "v_writelane")) or "_dpp" in mn: self.rd |= R[0]
            if "permlane" in mn: self.wr |= R[1]; self.rd |= R[0]
            if "_dpp" in mn: self.dpp = True
            if mn.startswith("v_cndmask") and len(ops) == 3: self.rd.add("vcc")
            if "_co_" in mn: self.wr |= R[1]
        elif mn.startswith("ds_read") or "_rtn_" in mn:
            self.k = "ds"; self.wr = R[0]
            for r in R[1:]: self.rd |= r
        elif mn.startswith("ds_"):
            self.k = "ds"
            for r in R: self.rd |= r
        elif mn.startswith(("buffer_load", "global_load")):
            self.k = "vm"
            if re.search(r"\blds\b", mods):
                for r in R: self.rd |= r
                self.rd.add("m0")
            else:
                self.wr = R[0]
                for r in R[1:]: self.rd |= r
        elif mn.startswith(("buffer_store", "buffer_atomic")):
            self.k = "vm"
            for r in R: self.rd |= r
            if mn.endswith(("x3", "x4")): self.wide = R[0]
        elif mn.startswith(("s_load", "s_memtime", "s_memrealtime")):
            self.k = "smem"; self.wr = R[0]
            for r in R[1:]: self.rd |= r
        elif mn in ("s_waitcnt", "s_barrier", "s_nop", "s_endpgm", "s_sleep", "s_setprio") or mn.startswith(("s_branch", "s_cbranch")):
            self.k = "ctl"
        elif mn.startswith(("s_cmp", "s_bitcmp")):
            self.k = "salu"
            for r in R: self.rd |= r
        elif mn.startswith("s_"):
            self.k = "salu"; self.wr = set(R[0])
            for r in R[1:]: self.rd |= r
            if "saveexec" in mn: self.wr.add("exec")
        else:
            raise ValueError("unknown instr " + t)

class Stream:
    def __init__(self): self.b = []; self._open = None
    def __call__(self, s, raw=False):
        last = None
        for l in s.split("\n"):
            l = l.strip()
            if not l: continue
            last = I(l, raw=raw)
            if self._open is not None: self._open.append(last)
            else: self.b.append([last])
        return last
    def begin(self): self._open = []
    def end(self): self.b.append(self._open); self._open = None
    def wait(self, *toks):
        fl = []
        for t in toks:
            if isinstance(t, (list, tuple)): fl += list(t)
            elif t is not None: fl.append(t)
        i = I("; wait", k="wait", tok=fl)
        if self._open is not None: self._open.append(i)
        else: self.b.append([i])
    def waitall(self, vm=False, lg=False):
        i = I("; waitall", k="waitall", tok=(vm, lg))
        if self._open is not None: self._open.append(i)
        else: self.b.append([i])
    def gap(self, n): self.b.append([I("; gap", k="gap", tok=n)])
    def c(self, s): self.b.append([I("; " + s, k="comment")])
    def add(self, other): self.b += other.b
    def flat(self): return [i for b in self.b for i in b]

SCC_USE = ("s_cselect", "s_cbranch_scc", "s_addc", "s_subb", "s_cmov")
def glue(st):
    out = []
    for b in st.b:
        first = next((i for i in b if i.k not in ("comment", "wait", "waitall")), None)
        uses = False
        for i in b:
            if i.mn.startswith("s_cmp"): break
            if i.mn.startswith(SCC_USE): uses = True; break
        if uses:
            k = len(out) - 1
            while k >= 0 and not any(x.mn.startswith(("s_cmp", "s_sub_u32", "s_add_u32", "s_and_b64")) for x in out[k]): k -= 1
            assert k >= 0
            m = [x for bb in out[k:] for x in bb] + b
            out = out[:k] + [m]
        else: out.append(b)
    st.b = out; return st
def icost(i):
    if i.k in ("comment", "label", "gap") or i.raw: return 0
    if i.k == "valu": return 8 if (i.mn.startswith(TRANS) or "permlane" in i.mn) else 4
    if i.k == "ds":
        if i.mn.startswith("ds_write_b128"): return 24
        if i.mn.startswith(("ds_write_b64", "ds_write2")): return 12
        return 8
    if i.k == "vm": return 8
    return 4
def adv(t, lastm, b):
    for i in b:
        if i.k == "mfma":
            t = max(t, lastm + 16); lastm = t; t += 4
        elif i.k == "valu": t = max(t, lastm + 8) + icost(i)
        else: t += icost(i)
    return t, lastm
def merge(main, fill, gapc=16, start=0, flush=True):
    glue(fill)
    gf_ = gapc if callable(gapc) else (lambda n, c=gapc: c)
    out = Stream(); q = list(fill.b); nm = 0; t = 0; lastm = -100; goal = 0; hold = 0
    mb = main.b
    for idx, b in enumerate(mb):
        out.b.append(b)
        ism = any(i.k == "mfma" for i in b)
        t, lastm = adv(t, lastm, b)
        if ism:
            nm += 1; gapc = gf_(nm); goal = min(max(goal, lastm - min(8, gapc - 16)), lastm) + gapc
            if hold: hold -= 1
        nxt_m = idx + 1 < len(mb) and any(i.k == "mfma" for i in mb[idx+1])
        if nm > start and nxt_m:
            while q and not hold:
                if q[0][0].k == "gap": hold = q.pop(0)[0].tok; continue
                t2, l2 = adv(t, lastm, q[0])
                if l2 != lastm:
                    out.b.append(q.pop(0)); t = t2; lastm = l2; goal = lastm + 8; continue
                big = t2 - max(t, lastm + 8) > gapc - 8
                if t2 <= goal or (big and t <= lastm + 8 and goal >= lastm + gapc - 4):
                    out.b.append(q.pop(0)); t = t2
                else: break
    left = Stream(); left.b = [x for x in q if x[0].k != "gap"]
    if flush: out.b += left.b
    out.left = left
    return out

def est(bundles):
    t = 0; lastm = -100; out = []
    for b in bundles:
        out.append(t); t, lastm = adv(t, lastm, b)
    return out, t
def pace(st, items, interval, t0=0, flush=True, scale=1.0):
    glue(st)
    ts, tot = est(st.b); out = Stream(); nxt = t0; q = items; cur = []
    M = [any(i.k == "mfma" for i in b) for b in st.b]
    for k, b in enumerate(st.b):
        out.b.append(b)
        tn = (ts[k+1] if k + 1 < len(ts) else tot) * scale
        near = any(M[max(0, k-3):k+4])
        free = (M[k] and k + 1 < len(M) and M[k+1]) or not near
        if not free: continue
        if cur: cur.pop(0)(out); continue
        if q and tn >= nxt:
            cur = list(q.pop(0)); cur.pop(0)(out); nxt = max(nxt + interval, tn + interval//2)
    while cur: cur.pop(0)(out)
    if flush:
        while q:
            for e in q.pop(0): e(out)
    return out

def finalize(stream, mfma_pass=4, drop=None, pre=()):
    if drop:
        sec = ""; nb = []
        for b in stream.b:
            x = []
            for i in b:
                if i.k == "comment" and i.t.startswith("; #"): sec = i.t[3:]
                if not i.raw and any(sec == d[0] and re.match(d[1], i.t) for d in drop): continue
                x.append(i)
            if x: nb.append(x)
        stream.b = nb
    ins = [i for i in stream.flat() if i.k != "gap"]
    out = []; vm = []; lg = []; smem_out = False
    def emit_wait(nv, nl):
        nonlocal vm, lg, smem_out
        parts = []
        if nv is not None:
            nv = min(nv, 63); parts.append(f"vmcnt({nv})"); vm = vm[len(vm)-nv:] if nv else []
        if nl is not None:
            if any(x.k == "smem" for x in lg): nl = 0
            nl = min(nl, 15); parts.append(f"lgkmcnt({nl})"); lg = lg[len(lg)-nl:] if nl else []
        if parts: out.append(I("s_waitcnt " + " ".join(parts)))
    seen = set(); defd = {"v0", "s0", "s1", "s2", "exec"} | set(pre)
    for i in ins:
        if i.raw:
            out.append(i); continue
        seen.add(id(i))
        if i.k not in ("wait", "waitall", "comment", "label"):
            und = [x for x in i.rd if x not in defd and not (i.mn.startswith("v_pk_mul") or i.mn.startswith("v_pk_fma"))]
            if und and not drop: print("WARNING use before def:", i.t, sorted(und)[:4])
            defd |= i.wr
        if i.k == "wait":
            nv = nl = None
            for t in i.tok:
                assert drop or id(t) in seen, "wait on op not yet issued: " + t.t
                if t in vm:
                    n = len(vm) - 1 - vm.index(t); nv = n if nv is None else min(nv, n)
                if t in lg:
                    n = len(lg) - 1 - lg.index(t); nl = n if nl is None else min(nl, n)
            emit_wait(nv, nl); continue
        if i.k == "waitall":
            emit_wait(0 if (i.tok[0] and vm) else None, 0 if (i.tok[1] and lg) else None); continue
        if i.k in ("comment", "label"):
            out.append(i); continue
        nv = nl = None
        touch = i.rd | i.wr
        for idx, o in enumerate(vm):
            t = i.rd if i.k == "vm" else touch
            if o.wr & t: nv = len(vm) - 1 - idx
        for idx, o in enumerate(lg):
            t = i.rd if (i.k == "ds" and o.k == "ds") else touch
            if o.wr & t: nl = len(lg) - 1 - idx
        emit_wait(nv, nl)
        if i.k == "vm":
            if len(vm) >= 63: emit_wait(62, None)
            vm.append(i)
        if i.k in ("ds", "smem"): lg.append(i)
        out.append(i)
    res = []; hist = []
    pos = 0
    P = {4: dict(rw=8, ab=8, cov=6, war=3), 8: dict(rw=12, ab=12, cov=10, war=7)}[mfma_pass]
    def isv(r): return r[0] in "va" and r[1:].isdigit()
    for i in out:
        if i.k in ("comment", "label") or i.raw:
            res.append(i); continue
        need = 0
        for (p, pp) in hist:
            d = pos - pp - 1
            req = 0
            if p.k == "valu":
                vw = {r for r in p.wr if isv(r)}
                sw = {r for r in p.wr if not isv(r)}
                if i.k == "mfma" and vw & i.rd: req = max(req, 2)
                if i.k == "valu":
                    if (i.dpp or "permlane" in i.mn) and vw & i.rd: req = max(req, 2)
                    if i.mn.startswith(("v_readlane", "v_readfirstlane")) and vw & i.rd: req = max(req, 1)
                    if p.mn.startswith(TRANS) and not i.mn.startswith(TRANS) and vw & i.rd: req = max(req, 1)
                    if sw & i.rd: req = max(req, 2)
                if i.k == "vm" and sw & i.rd: req = max(req, 5)
                if i.k in ("salu", "ctl") and sw and (sw & i.rd or i.mn.startswith("s_cbranch_vcc")): req = max(req, 1)
            if p.k == "valu" and p.mn.startswith("v_dot") and i.k in ("valu", "mfma", "vm", "ds") and p.wr & (i.rd | i.wr):
                if not (i.mn == p.mn and p.wr == i.wr): req = max(req, 3)
            if p.k == "mfma":
                if i.k == "mfma":
                    if p.wr & i.srcab: req = max(req, P["ab"])
                    if p.wr & i.srcc and p.wr != i.srcc: req = max(req, P["cov"])
                    if p.wr & i.wr and not (p.wr & i.srcc): req = max(req, P["cov"])
                elif i.k in ("valu", "vm", "ds"):
                    if p.wr & (i.rd | i.wr): req = max(req, P["rw"])
                    if i.k == "valu" and p.srcc & i.wr: req = max(req, P["war"])
            if p.k == "salu" and "m0" in p.wr and "m0" in i.rd and i.k == "vm": req = max(req, 1)
            if p.k == "vm" and p.wide and p.wide & i.wr: req = max(req, 2)
            need = max(need, req - d)
        while need > 0:
            n = min(need, 16); res.append(I(f"s_nop {n-1}")); pos += n; need -= n
        res.append(i)
        hist.append((i, pos))
        if i.mn == "s_nop": pos += int(i.t.split()[1]) + 1
        else: pos += 1
        hist = [(p, pp) for (p, pp) in hist if pos - pp < 24]
    txt = []
    for i in res:
        if i.k == "label" or (i.raw and i.t.endswith(":")): txt.append(i.t)
        else: txt.append("    " + i.t)
    return "\n".join(txt) + "\n"

class Blk:
    def __init__(self, q, off=0): self.q = q; self.off = off
    def __add__(self, k): return Blk(self.q, self.off + k)
    __radd__ = __add__
    def __sub__(self, k): return Blk(self.q, self.off - k)
    def res(self, n):
        assert (self.off % 4) + n <= 4, (self.off, n)
        return self.q[self.off // 4] + self.off % 4
class Alloc:
    def __init__(self, pfx, lo, hi):
        self.p = pfx; self.free = set(range(lo, hi)); self.hw = 0; self.minfree = 999
    def _get(self, n, align, rev):
        for s in sorted(self.free, reverse=rev):
            if s % align == 0 and all((s + k) in self.free for k in range(n)):
                for k in range(n): self.free.discard(s + k)
                self.hw = max(self.hw, s + n); self.minfree = min(self.minfree, len(self.free))
                return s
        raise RuntimeError(f"out of {self.p} regs for {n}; free={len(self.free)}")
    def get(self, n=1, align=1):
        if n > 4 and self.p != "s":
            return Blk([self._get(4, 4, True) for _ in range((n + 3) // 4)])
        if n >= 2 and align == 1: align = 2
        if n > 2: align = 4
        return self._get(n, align, False)
    def grp(self, n):
        out = []
        while len(out) < n:
            q = self._get(4, 4, True); out += [q, q+1, q+2, q+3]
        for x in out[n:]: self.free.add(x)
        return out[:n]
    def rel(self, s, n=1):
        if isinstance(s, Blk):
            for q in s.q: self.rel(q, 4)
            return
        for k in range(n):
            assert (s + k) not in self.free, (self.p, s + k)
            self.free.add(s + k)
def r(p, s, n=1):
    if isinstance(s, Blk): s = s.res(n)
    return f"{p}{s}" if n == 1 else f"{p}[{s}:{s+n-1}]"
def v(s, n=1): return r("v", s, n)
def a(s, n=1): return r("a", s, n)
def s_(s, n=1): return r("s", s, n)
```
